```python
import torch

def _softmax(x, axis=-1):
    return torch.softmax(x, dim=axis)
def _gelu(x):
    return torch.nn.functional.gelu(x, approximate="tanh")
def _silu(x):
    return torch.nn.functional.silu(x)
def _sigmoid(x):
    return torch.sigmoid(x)
def _layernorm(x, axis=-1, eps=1e-5):
    m = x.mean(dim=axis, keepdim=True)
    v = x.var(dim=axis, keepdim=True, unbiased=False)
    return (x - m) / torch.sqrt(v + eps)
def _scatter_add(tgt, idx, src, axis=0):
    return tgt.clone().index_add_(axis, idx, src)
def _segment_sum(src, seg, n):
    out = torch.zeros((n,) + src.shape[1:], dtype=src.dtype)
    return out.index_add_(0, seg, src)
def _pad(x, pw):
    flat = tuple(v for pair in reversed(pw) for v in pair)
    return torch.nn.functional.pad(x, flat)

kernel_name = 'parallel_sum__spectral_gfnet__glu_gated_geglu__prompt'

def setup_inputs():

    _w = (lambda a: (lambda t: t.to(torch.bfloat16) if t.is_floating_point() else t)(torch.as_tensor(a)))
    def _A_setup():
        B, S, D = 1, 2048, 576
        Df = D // 2 + 1
        return {
            "x": _w((lambda *s: torch.randn(*s, dtype=torch.bfloat16) * 0.05)(B, S, D)),
            "w_r": _w((lambda *s: torch.randn(*s, dtype=torch.bfloat16) * 0.8)(S, Df) * 0.02),
            "w_i": _w((lambda *s: torch.randn(*s, dtype=torch.bfloat16) * 0.8)(S, Df) * 0.02),
        }
    _A_in = _A_setup()

    def _B_setup():
        B, S, Dm, Df = 1, 2048, 576, 4608
        return {
            "x": _w((lambda *s: torch.randn(*s, dtype=torch.bfloat16) * 0.05)(B, S, Dm)),
            "w_gate": _w((lambda *s: torch.randn(*s, dtype=torch.bfloat16) * 0.4)(Dm, Df) * (Dm ** -0.5)),
            "w_up": _w((lambda *s: torch.randn(*s, dtype=torch.bfloat16) * 0.4)(Dm, Df) * (Dm ** -0.5)),
            "w_down": _w((lambda *s: torch.randn(*s, dtype=torch.bfloat16) * 0.4)(Df, Dm) * (Df ** -0.5)),
        }
    _B_in = _B_setup()

    return {
        "A_x": _A_in["x"],
        "A_w_r": _A_in["w_r"],
        "A_w_i": _A_in["w_i"],
        "B_x": _B_in["x"],
        "B_w_gate": _B_in["w_gate"],
        "B_w_up": _B_in["w_up"],
        "B_w_down": _B_in["w_down"],
    }

def reference(A_x, A_w_r, A_w_i, B_x, B_w_gate, B_w_up, B_w_down):
    def _A_ref(x, w_r, w_i):
        B, S, D = x.shape
        X = (lambda x, axes=(-2,-1): torch.fft.rfft2(x.float(), dim=axes))(x, axes=(-2, -1))
        W = w_r + 1j * w_i
        X = X * W
        y = (lambda x, s, axes=(-2,-1): torch.fft.irfft2(x, s=s, dim=axes).to(torch.bfloat16))(X, (S, D), axes=(-2, -1))
        return y

    def _B_ref(x, w_gate, w_up, w_down):
        g = torch.einsum("bsd,df->bsf", x, w_gate)
        u = torch.einsum("bsd,df->bsf", x, w_up)
        h = _gelu(g) * u
        return torch.einsum("bsf,fd->bsd", h, w_down)

    x = A_x
    xn = _layernorm(x, axis=-1)
    return x + _A_ref(xn, A_w_r, A_w_i) + _B_ref(xn, B_w_gate, B_w_up, B_w_down)
```

```python
XN=0x0; Y1T=0x240000; WT=0x4E0000; ZF=0x730000; GF=0x980000; CF32=0xA30000; CF64=0xA32000; CTW=0xA36000
HF=0x1000000; PF=0x2300000
WS_SIZE=0x10000000
class E:
    def __init__(s): s.l=[]
    def __call__(s, t):
        for x in t.strip('\n').split('\n'): s.l.append('    '+x.strip())
    def lab(s, n): s.l.append(n+':')
    def text(s): return '\n'.join(s.l)+'\n'
def srd(e, d, src_lo, size):
    e(f"s_mov_b32 s{d}, s{src_lo}\ns_mov_b32 s{d+1}, s{src_lo+1}\ns_mov_b32 s{d+2}, {size}\ns_mov_b32 s{d+3}, 0x00020000")
def head(e, name):
    e.l.append(f".globl {name}\n.p2align 8\n.type {name},@function\n{name}:")
def desc(name, vg, sg=96):
    acc=(vg+3)//4*4
    return f""".amdhsa_kernel {name}
  .amdhsa_next_free_vgpr {vg}
  .amdhsa_next_free_sgpr {sg}
  .amdhsa_accum_offset {acc}
  .amdhsa_group_segment_fixed_size 0
  .amdhsa_kernarg_size 80
  .amdhsa_user_sgpr_count 2
  .amdhsa_user_sgpr_kernarg_segment_ptr 1
  .amdhsa_system_sgpr_workgroup_id_x 1
.end_amdhsa_kernel
"""
def fbits(x):
    import struct; return '0x%08x'%struct.unpack('<I',struct.pack('<f',x))[0]
def cosev(e, vd, vx, voff, vt, sInv, sNegN):
    e(f"""v_mul_f32 v{vt}, s{sInv}, v{vx}
    v_rndne_f32 v{vt}, v{vt}
    v_fma_f32 v{vt}, s{sNegN}, v{vt}, v{vx}
    v_fma_f32 v{vt}, s{sInv}, v{vt}, v{voff}
    v_cos_f32 v{vd}, v{vt}""")
```

```python
from gen_common import *
def mf(e,d,a,b,first): e(f"v_mfma_f32_32x32x16_bf16 v[{d}:{d+15}], v[{a}:{a+3}], v[{b}:{b+3}], {'0' if first else f'v[{d}:{d+15}]'}")
def fft(e):
    e.lab("K2_FFT")
    RE,IM=80,96
    e(f"""s_sub_u32 s24, s2, 256
    s_lshl_b32 s25, s24, 3
    s_add_u32 s25, s25, s3
    v_and_b32 v3, 31, v2
    v_lshrrev_b32 v1, 5, v2
    v_lshlrev_b32 v4, 10, v1
    v_lshl_add_u32 v4, v3, 2, v4
    v_lshlrev_b32 v5, 4, v2
    v_lshlrev_b32 v6, 3, v2
    s_lshl_b32 s26, s25, 13
    s_add_u32 s27, s26, {Y1T}
    s_add_u32 s28, s27, 4096
    s_add_u32 s29, s26, {WT}
    s_mov_b32 s33, {CF32}
    s_mov_b32 s34, {CF64}
    s_mov_b32 s35, {CTW}
    s_mul_i32 s36, s3, 9216""")
    for mt in range(2):
        for q in range(4):
            for ee in range(4):
                e(f"buffer_load_dword v{16+16*mt+4*q+ee}, v4, s[8:11], s{27+(q>>1)} offen offset:{(q&1)*2048+ee*256+mt*128}")
    def ldfr(base, sreg, piece0, n):
        for p in range(n):
            pp=piece0+p
            e(f"s_add_u32 s37, s{sreg}, {(pp>>2)*4096}\nbuffer_load_dwordx4 v[{base+4*p}:{base+4*p+3}], v5, s[8:11], s37 offen offset:{(pp&3)*1024}")
    ldfr(48,33,0,8)
    def ldtw(base,u,i):
        pp=(u*4+i)*2
        e(f"s_add_u32 s37, s35, {(pp>>2)*4096}\nbuffer_load_dwordx4 v[{base}:{base+3}], v5, s[8:11], s37 offen offset:{(pp&3)*1024}\nbuffer_load_dwordx4 v[{base+4}:{base+7}], v5, s[8:11], s37 offen offset:{((pp&3)+1)*1024}")
    def twiddle(u, conj, sink):
        ldtw(112,u,0); ldtw(120,u,1)
        for i in range(4):
            tb=112+8*(i&1)
            e(f"s_waitcnt vmcnt({2 if i<3 else 0})")
            for r in range(4):
                dr,di=RE+4*i+r,IM+4*i+r; wr,wi=tb+r,tb+4+r
                if not conj:
                    e(f"v_mul_f32 v{8+r}, v{dr}, v{wr}\nv_mul_f32 v{12+r}, v{dr}, v{wi}\nv_fma_f32 v{8+r}, -v{di}, v{wi}, v{8+r}\nv_fma_f32 v{12+r}, v{di}, v{wr}, v{12+r}")
                else:
                    e(f"v_mul_f32 v{8+r}, v{dr}, v{wr}\nv_mul_f32 v{12+r}, v{di}, v{wr}\nv_fma_f32 v{8+r}, v{di}, v{wi}, v{8+r}\nv_fma_f32 v{12+r}, -v{dr}, v{wi}, v{12+r}")
            if i<2: ldtw(tb,u,i+2)
            sink(i)
    TRE=lambda q:16+4*(q&1)+16*(q>>1)
    TIM=lambda q:24+4*(q&1)+16*(q>>1)
    for mt in range(2):
        if mt==0: e("s_waitcnt vmcnt(0)")
        for q in range(4): mf(e,RE,16+16*mt+4*q,48+4*q,q==0)
        for q in range(4): mf(e,IM,16+16*mt+4*q,64+4*q,q==0)
        e("s_nop 7\ns_nop 3")
        def sink(i,mt=mt):
            q=2*mt+(i>>1); o=2*(i&1)
            e(f"v_cvt_pk_bf16_f32 v{TRE(q)+o}, v8, v9\nv_cvt_pk_bf16_f32 v{TRE(q)+o+1}, v10, v11\nv_cvt_pk_bf16_f32 v{TIM(q)+o}, v12, v13\nv_cvt_pk_bf16_f32 v{TIM(q)+o+1}, v14, v15")
        twiddle(mt,False,sink)
    def neg(regs):
        for r in regs: e(f"v_xor_b32 v{r}, 0x80008000, v{r}")
    TIMR=[TIM(q)+t for q in range(4) for t in range(4)]
    def ldw(base,u):
        for i in range(4):
            for rp in range(2):
                pp=(u*4+i)*2+rp
                e(f"s_add_u32 s37, s29, {(pp>>3)*4096}\nbuffer_load_dwordx2 v[{base+4*i+2*rp}:{base+4*i+2*rp+1}], v6, s[8:11], s37 offen offset:{(pp&7)*512}")
    VB=[112,16]
    for u in range(2):
        ldfr(48,34,u*8,8)
        if u==0: ldw(112,0)
        e(f"s_waitcnt vmcnt({8 if u==0 else 0})\ns_nop 1")
        if u==0:
            for q in range(4): mf(e,RE,48+4*q,TRE(q),q==0)
            for q in range(4): mf(e,IM,48+4*q,TIM(q),q==0)
            for q in range(4): mf(e,IM,64+4*q,TRE(q),False)
            neg(TIMR); e("s_nop 1")
            for q in range(4): mf(e,RE,64+4*q,TIM(q),False)
        else:
            for q in range(4): mf(e,RE,48+4*q,TRE(q),q==0)
            for q in range(4): mf(e,RE,64+4*q,TIM(q),False)
            neg(TIMR); e("s_nop 1")
            for q in range(4): mf(e,IM,48+4*q,TIM(q),q==0)
            for q in range(4): mf(e,IM,64+4*q,TRE(q),False)
            ldw(16,1)
        e("s_nop 7\ns_nop 3\ns_waitcnt vmcnt(0)")
        wb=VB[u]
        for hf in range(2):
            for ii in range(2):
                for r in range(4):
                    w=wb+4*(2*hf+ii)+r
                    e(f"v_lshlrev_b32 v{48+8*ii+r}, 16, v{w}\nv_and_b32 v{52+8*ii+r}, 0xffff0000, v{w}")
            for ii in range(2):
                i=2*hf+ii
                for r in range(4):
                    dr,di=RE+4*i+r,IM+4*i+r; wr,wi=48+8*ii+r,52+8*ii+r
                    e(f"v_mul_f32 v{8+r}, v{dr}, v{wr}\nv_mul_f32 v{12+r}, v{dr}, v{wi}\nv_fma_f32 v{8+r}, -v{di}, v{wi}, v{8+r}\nv_fma_f32 v{12+r}, v{di}, v{wr}, v{12+r}")
                o=wb+8*hf+2*ii
                e(f"v_cvt_pk_bf16_f32 v{o}, v8, v9\nv_cvt_pk_bf16_f32 v{o+1}, v10, v11\nv_cvt_pk_bf16_f32 v{o+4}, v12, v13\nv_cvt_pk_bf16_f32 v{o+5}, v14, v15")
    VRE=lambda q:VB[q>>1]+8*(q&1)
    VIM=lambda q:VB[q>>1]+8*(q&1)+4
    VRER=[VRE(q)+t for q in range(4) for t in range(4)]
    for r in range(16): e(f"v_mov_b32 v{32+r}, v{112+r}")
    VB=[32,16]
    VRER=[VRE(q)+t for q in range(4) for t in range(4)]
    e(f"""v_mul_u32_u24 v7, 576, v1
    v_lshl_add_u32 v7, v3, 2, v7
    v_add_u32 v7, s36, v7""")
    for mt in range(2):
        ldfr(48,34,mt*8,8)
        e("s_waitcnt vmcnt(0)\ns_nop 1")
        if mt==0:
            for q in range(4): mf(e,RE,48+4*q,VRE(q),q==0)
            for q in range(4): mf(e,RE,64+4*q,VIM(q),False)
            for q in range(4): mf(e,IM,48+4*q,VIM(q),q==0)
            neg(VRER); e("s_nop 1")
            for q in range(4): mf(e,IM,64+4*q,VRE(q),False)
        else:
            for q in range(4): mf(e,IM,48+4*q,VIM(q),q==0)
            for q in range(4): mf(e,IM,64+4*q,VRE(q),False)
            neg(VRER); e("s_nop 1")
            for q in range(4): mf(e,RE,48+4*q,VRE(q),q==0)
            for q in range(4): mf(e,RE,64+4*q,VIM(q),False)
        e("s_nop 7\ns_nop 3")
        def sink(i,mt=mt):
            for r in range(4):
                e(f"v_cvt_pk_bf16_f32 v{8+r}, v{12+r}, v{8+r}\nds_write_b32 v7, v{8+r} offset:{(32*mt+8*i+r)*144}")
        twiddle(mt,True,sink)
    ldfr(48,33,0,8)
    e(f"""v_mul_u32_u24 v7, 144, v3
    v_lshl_add_u32 v7, v1, 4, v7
    v_add_u32 v7, s36, v7
    s_waitcnt lgkmcnt(0)""")
    for q in range(4): e(f"ds_read_b128 v[{112+4*q}:{115+4*q}], v7 offset:{32*q}")
    e("s_waitcnt vmcnt(0) lgkmcnt(0)")
    for q in range(4): mf(e,80,64+4*q,112+4*q,q==0)
    for q in range(4): mf(e,96,48+4*q,112+4*q,q==0)
    for q in range(4): e(f"ds_read_b128 v[{112+4*q}:{115+4*q}], v7 offset:{32*144+32*q}")
    e("s_waitcnt lgkmcnt(0)")
    for q in range(4): mf(e,16,64+4*q,112+4*q,q==0)
    for q in range(4): mf(e,32,48+4*q,112+4*q,q==0)
    e(f"""s_barrier
    s_lshl_b32 s37, s3, 2
    v_lshlrev_b32 v7, 13, v1
    v_lshl_add_u32 v7, v3, 5, v7
    v_add_u32 v7, s37, v7
    v_add_u32 v8, 32768, v7
    s_nop 7""")
    for mt,(zr,zi) in enumerate([(80,96),(16,32)]):
        for i in range(4):
            for r in range(4):
                e(f"v_cvt_pk_bf16_f32 v{48+4*i+r}, v{zr+4*i+r}, v{zi+4*i+r}")
        for i in range(4):
            for r in range(4):
                off=(8*(i&1)+r)*2048+mt*1024
                e(f"ds_write_b32 v{7 if i<2 else 8}, v{48+4*i+r} offset:{off}")
    e(f"""s_waitcnt lgkmcnt(0)
    s_barrier
    v_lshlrev_b32 v7, 5, v3
    v_lshl_add_u32 v7, v1, 4, v7
    s_lshl_b32 s37, s3, 13
    v_add_u32 v7, s37, v7
    s_lshl_b32 s38, s3, 3
    s_mul_i32 s38, s38, 37
    s_add_u32 s38, s38, s24
    s_lshl_b32 s38, s38, 10
    s_add_u32 s38, s38, {ZF}""")
    for j in range(8): e(f"ds_read_b128 v[{16+4*j}:{19+4*j}], v7 offset:{j*1024}")
    for j in range(8):
        e(f"s_waitcnt lgkmcnt({7-j})\nbuffer_store_dwordx4 v[{16+4*j}:{19+4*j}], v5, s[8:11], s38 offen\ns_add_u32 s38, s38, {37*1024}")
    e("s_waitcnt vmcnt(0)\ns_endpgm")
```

```python
from gen_common import *
def mainloop(e, tag, nA, nB, NST, STG, NCH, aoff, boff, dmas, nvm, ACC, FR, vA, vB, sStage, sIt, inplace=0):
    def rb(set_,b): return FR+set_*4*nB+4*b
    def ra(set_,a):
        base=FR+8*nB
        if a<inplace: return base+4*a
        return base+4*inplace+(set_*(nA-inplace)+(a-inplace))*4
    def rdA(set_,q,a):
        r=ra(set_,a)
        return [f"ds_read_b64_tr_b16 v[{r}:{r+1}], v{vA} offset:{aoff(a,q,0)}", f"ds_read_b64_tr_b16 v[{r+2}:{r+3}], v{vA} offset:{aoff(a,q,1)}"]
    def reads(set_, q, all_=False):
        L=[]
        for b in range(nB): L.append(f"ds_read_b128 v[{rb(set_,b)}:{rb(set_,b)+3}], v{vB} offset:{boff(b,q)}")
        for a in list(range(inplace,nA))+list(range(inplace)): L+=rdA(set_,q,a)
        return L
    def mfmas(set_):
        L=[]
        for a in range(nA):
            for b in range(nB):
                d=ACC+16*(a*nB+b); x=ra(set_,a); y=rb(set_,b)
                L.append(f"v_mfma_f32_32x32x16_bf16 v[{d}:{d+15}], v[{x}:{x+3}], v[{y}:{y+3}], v[{d}:{d+15}]")
        return L
    def inter(M, O):
        n=len(M); k=0; lim=len(O)-2*inplace
        for i,m in enumerate(M):
            e(m)
            tgt=(len(O)*(i+1)+n-1)//n
            if i+1<inplace*nB: tgt=min(tgt,lim)
            while k<tgt: e(O[k]); k+=1
    e(f"s_waitcnt vmcnt({nvm*(NST-1)})\ns_barrier")
    for x in reads(0,0): e(x)
    e(f"s_mov_b32 s{sIt}, 0")
    e.lab(f"{tag}_LOOP")
    e("s_waitcnt lgkmcnt(0)")
    inter(mfmas(0), reads(1,1))
    e(f"""s_add_u32 s{sStage}, s{sStage}, {STG}
    s_cmp_eq_u32 s{sStage}, {STG*NST}
    s_cselect_b32 s{sStage}, 0, s{sStage}
    s_waitcnt vmcnt({nvm*(NST-2)}) lgkmcnt(0)
    s_barrier""")
    upd=[f"v_add_u32 v{vA}, s{sStage}, v{vA+1}", f"v_add_u32 v{vB}, s{sStage}, v{vB+1}"]
    for x in upd: e(x)
    inter(mfmas(1), reads(0,0)[:2]+dmas+reads(0,0)[2:])
    e(f"""s_add_u32 s{sIt}, s{sIt}, 1
    s_cmp_lt_u32 s{sIt}, {NCH}
    s_cbranch_scc1 {tag}_LOOP""")

def gelu_mul(e, g, u, t0, t1):
    import math
    c = -2*math.sqrt(2/math.pi)*math.log2(math.e)
    return [f"v_mul_f32 v{t0}, v{g}, v{g}",
            f"v_fma_f32 v{t0}, v{t0}, s46, v52",
            f"v_mul_f32 v{t0}, v{t0}, v{g}",
            f"v_exp_f32 v{t0}, v{t0}",
            f"v_mul_f32 v{t1}, v{g}, v{u}",
            f"v_add_f32 v{t0}, 1.0, v{t0}",
            f"v_rcp_f32 v{t0}, v{t0}",
            None,
            f"v_mul_f32 v{g}, v{t1}, v{t0}"]

def k1():
    import math
    e=E(); head(e,"k1_kernel")
    STG=35072; NST=4; GOFF=16384; UOFF=GOFF+9216+128
    c=-2*math.sqrt(2/math.pi)*math.log2(math.e)
    e(f"""s_cmp_ge_u32 s2, 256
    s_cbranch_scc1 K1_END
    s_load_dwordx2 s[6:7], s[0:1], 72
    s_load_dwordx4 s[20:23], s[0:1], 32
    v_lshrrev_b32 v1, 6, v0
    v_and_b32 v2, 63, v0
    s_nop 0
    v_readfirstlane_b32 s3, v1
    s_and_b32 s24, s2, 7
    s_lshl_b32 s24, s24, 2
    s_bfe_u32 s25, s2, 0x20003
    s_add_u32 s24, s24, s25
    s_lshr_b32 s25, s2, 5
    s_mov_b32 s46, {fbits(c*0.044715)}
    s_mov_b32 s47, {fbits(c)}
    s_waitcnt lgkmcnt(0)""")
    srd(e,8,6,WS_SIZE); srd(e,12,20,576*4608*2); srd(e,16,22,576*4608*2)
    e(f"""v_bfe_u32 v3, v2, 4, 1
    v_lshrrev_b32 v4, 5, v2
    v_bfe_u32 v5, v2, 2, 2
    v_and_b32 v6, 1, v2
    v_bfe_u32 v7, v2, 1, 1
    v_lshlrev_b32 v6, 4, v6
    v_lshl_or_b32 v6, v7, 3, v6
    v_lshl_add_u32 v5, v4, 3, v5
    v_mul_u32_u24 v5, 288, v5
    v_add_u32 v5, v5, v6
    v_mul_u32_u24 v3, {UOFF-GOFF}, v3
    v_add_u32 v5, v5, v3
    v_add_u32 v11, {GOFF}, v5
    s_and_b32 s26, s3, 3
    s_lshr_b32 s27, s3, 2
    s_mul_i32 s28, s27, 160
    v_add_u32 v11, s28, v11
    v_mov_b32 v10, v11
    v_lshlrev_b32 v13, 4, v2
    s_lshl_b32 s28, s26, 12
    v_add_u32 v13, s28, v13
    v_mov_b32 v12, v13
    s_mov_b32 s30, 0
    s_mov_b32 s32, 0""")
    e("s_cmp_eq_u32 s27, 1\ns_cbranch_scc1 K1_B")
    for ty,(nA,a0) in enumerate([(5,0),(4,5)]):
        tag="K1A" if ty==0 else "K1B"
        if ty==1: e.lab("K1_B")
        if ty==0:
            e(f"""s_lshl_b32 s33, s25, 3
            s_lshl_b32 s34, s26, 1
            s_add_u32 s33, s33, s34
            s_mul_i32 s33, s33, {36*1024}
            s_add_u32 s33, s33, {XN}
            v_lshlrev_b32 v14, 4, v2
            v_add_u32 v15, {36*1024}, v14
            s_lshl_b32 s35, s26, 12""")
            dm=[]
            for p in range(4):
                dm.append(f"s_add_u32 m0, s36, {p*1024}")
                dm.append(f"buffer_load_dwordx4 v{14+(p>>1)}, s[8:11], s33 offen lds" if p%2==0 else f"s_add_u32 s37, s33, 1024\nbuffer_load_dwordx4 v{14+(p>>1)}, s[8:11], s37 offen lds")
            pre=["s_add_u32 s36, s32, s35"]
            post=["s_add_u32 s33, s33, 2048", f"s_add_u32 s32, s32, {STG}", f"s_cmp_eq_u32 s32, {STG*NST}", "s_cselect_b32 s32, 0, s32"]
            nvm=4
        else:
            e(f"""s_lshr_b32 s34, s26, 1
            s_and_b32 s35, s26, 1
            s_cmp_eq_u32 s34, 1
            s_cselect_b32 s40, s16, s12
            s_cselect_b32 s41, s17, s13
            s_mov_b32 s42, s14
            s_mov_b32 s43, s15
            s_mul_i32 s33, s24, 288
            s_mul_i32 s38, s35, 288""")
            for p in range(5):
                e(f"""v_add_u32 v20, {64*p}, v2
                v_add_u32 v20, s38, v20
                v_mul_u32_u24 v21, 3641, v20
                v_lshrrev_b32 v21, 16, v21
                v_mul_u32_u24 v22, 18, v21
                v_sub_u32 v22, v20, v22
                v_mul_u32_u24 v21, 9216, v21
                v_lshl_add_u32 v{14+p}, v22, 4, v21""")
            e(f"""s_mul_i32 s35, s35, 4608
            s_mul_i32 s34, s34, {UOFF-GOFF}
            s_add_u32 s35, s35, s34
            s_add_u32 s35, s35, {GOFF}""")
            dm=[]
            for p in range(5):
                dm.append(f"s_add_u32 m0, s36, {p*1024}")
                if p<4: dm.append(f"s_nop 0\nbuffer_load_dwordx4 v{14+p}, s[40:43], s33 offen lds")
                else: dm.append(f"s_mov_b32 exec_hi, 0\nbuffer_load_dwordx4 v{14+p}, s[40:43], s33 offen lds\ns_mov_b32 exec_hi, -1")
            pre=["s_add_u32 s36, s32, s35"]
            post=[f"s_add_u32 s33, s33, {32*9216}", f"s_add_u32 s32, s32, {STG}", f"s_cmp_eq_u32 s32, {STG*NST}", "s_cselect_b32 s32, 0, s32"]
            nvm=5
        dmas=pre+dm+post
        if ty==0: dmas=[x if not x.startswith("buffer_load") else "s_nop 0\n"+x for x in dmas]
        for _ in range(NST):
            for x in dmas: e(x)
        ACC=96; FR=24
        nB=2
        for r in range(16*nA*nB): e(f"v_mov_b32 v{ACC+r}, 0")
        mainloop(e,tag,nA,nB,NST,STG,18,lambda a,q,j:(16*q+4*j)*288+32*a,lambda b,q:b*2048+q*1024,dmas,nvm,ACC,FR,10,12,30,31)
        e(f"""s_waitcnt vmcnt(0)
        s_lshl_b32 s33, s25, 3
        s_lshl_b32 s34, s26, 1
        s_add_u32 s33, s33, s34
        s_mul_i32 s33, s33, 288
        s_mul_i32 s34, s24, 9
        s_add_u32 s33, s33, s34
        s_add_u32 s33, s33, {a0}
        s_lshl_b32 s33, s33, 10
        s_add_u32 s33, s33, {HF}
        v_lshlrev_b32 v14, 4, v2
        v_mov_b32 v52, s47
        s_nop 7""")
        for a in range(nA):
            for b in range(nB):
                d=ACC+16*(a*nB+b)
                seqs=[gelu_mul(e,d+t,d+8+t,24+2*t,25+2*t) for t in range(8)]
                for st in range(9):
                    for t in range(8):
                        if seqs[t][st]: e(seqs[t][st])
                o=44+4*((a*nB+b)%2)
                for t in range(4): e(f"v_cvt_pk_bf16_f32 v{o+t}, v{d+2*t}, v{d+2*t+1}")
                e(f"s_add_u32 s34, s33, {(b*288+a)*1024}\nbuffer_store_dwordx4 v[{o}:{o+3}], v14, s[8:11], s34 offen")
        e("s_waitcnt vmcnt(0)\ns_endpgm")
    e.lab("K1_END"); e("s_endpgm")
    return e.text()
```

```python
from gen_common import *
def k0():
    e=E(); head(e,"k0_kernel")
    e("""s_cmp_ge_u32 s2, 256
    s_cbranch_scc1 K0_END
    s_load_dwordx2 s[4:5], s[0:1], 0
    s_load_dwordx2 s[6:7], s[0:1], 72
    s_load_dwordx4 s[20:23], s[0:1], 8
    v_lshrrev_b32 v1, 6, v0
    v_and_b32 v2, 63, v0
    s_nop 0
    v_readfirstlane_b32 s3, v1
    v_and_b32 v3, 31, v2
    v_lshrrev_b32 v4, 5, v2
    s_mov_b32 s30, %s
    s_mov_b32 s31, %s
    s_waitcnt lgkmcnt(0)"""%(fbits(1/576),fbits(-576.0)))
    srd(e,8,6,WS_SIZE); srd(e,12,4,2048*576*2)
    e("s_cmp_ge_u32 s2, 224\ns_cbranch_scc1 K0_WT")
    e("""s_and_b32 s24, s2, 31
    s_lshr_b32 s25, s2, 5
    s_and_b32 s26, s3, 1
    s_lshr_b32 s27, s3, 1
    s_lshl_b32 s28, s24, 1
    s_add_u32 s28, s28, s26
    s_lshl_b32 s29, s28, 5
    v_add_u32 v5, s29, v3
    v_mul_u32_u24 v5, 1152, v5
    v_lshl_add_u32 v5, v4, 4, v5
    s_mul_i32 s33, s27, 288""")
    for c in range(9): e(f"buffer_load_dwordx4 v[{64+4*c}:{67+4*c}], v5, s[12:15], s33 offen offset:{32*c}")
    e("s_cmp_ge_u32 s3, 6\ns_cbranch_scc1 K0_GEN")
    e("""s_mul_i32 s34, s25, 3
    s_add_u32 s34, s34, s27
    s_lshl_b32 s34, s34, 5
    v_add_u32 v6, s34, v3
    v_lshrrev_b32 v7, 1, v6
    v_and_b32 v8, 1, v6
    v_cvt_f32_u32 v9, v7
    v_cvt_f32_u32 v10, v8
    v_mul_f32 v10, 0.25, v10
    v_cmp_ge_u32 vcc, 288, v7
    v_mov_b32 v11, 1.0
    s_nop 0
    v_cndmask_b32 v11, 0, v11, vcc
    v_mov_b32 v12, 0""")
    cosev(e,13,9,12,14,30,31)
    e("""s_nop 0
    v_add_f32 v13, v13, v13
    s_mul_i32 s35, s26, 288
    v_lshlrev_b32 v15, 3, v4
    v_add_u32 v15, s35, v15
    v_cvt_f32_u32 v15, v15
    v_mul_f32 v16, v15, v9
    v_mul_f32 v17, %s, v9
    s_mul_i32 s36, s27, 36
    s_mul_i32 s37, s26, 18
    s_add_u32 s36, s36, s37
    s_lshl_b32 s36, s36, 10
    v_lshlrev_b32 v18, 4, v2
    v_add_u32 v18, s36, v18
    s_mov_b32 s38, 0"""%fbits(16.0))
    e.lab("K0_FL")
    cosev(e,20,16,10,14,30,31)
    e("v_add_f32 v19, v16, v9")
    cosev(e,21,19,10,14,30,31)
    e("v_mul_f32 v20, v20, v11\nv_mul_f32 v21, v21, v11")
    for t in range(2,8): e(f"v_fma_f32 v{20+t}, v13, v{19+t}, -v{18+t}")
    for t in range(4): e(f"v_cvt_pk_bf16_f32 v{28+t}, v{20+2*t}, v{21+2*t}")
    e("""v_add_f32 v16, v16, v17
    ds_write_b128 v18, v[28:31]
    v_add_u32 v18, 1024, v18
    s_add_u32 s38, s38, 1
    s_cmp_lt_u32 s38, 18
    s_cbranch_scc1 K0_FL
    s_branch K0_LN""")
    e.lab("K0_GEN")
    e("""s_lshl_b32 s34, s2, 1
    s_add_u32 s34, s34, s3
    s_sub_u32 s34, s34, 6""")
    e.lab("K0_GL")
    e("""s_cmp_ge_u32 s34, 706
    s_cbranch_scc1 K0_LN
    s_cmp_ge_u32 s34, 666
    s_cbranch_scc1 K0_GC""")
    e("""s_mul_i32 s35, s34, 1772
    s_lshr_b32 s35, s35, 16
    s_mul_i32 s36, s35, 37
    s_sub_u32 s36, s34, s36
    v_and_b32 v6, 0x13, v3
    v_bfe_u32 v7, v3, 2, 1
    v_lshl_or_b32 v6, v7, 3, v6
    v_bfe_u32 v7, v3, 3, 1
    v_lshl_or_b32 v6, v7, 2, v6
    s_lshl_b32 s37, s35, 5
    v_add_u32 v6, s37, v6
    v_cvt_f32_u32 v9, v6
    s_lshl_b32 s37, s36, 3
    v_lshlrev_b32 v7, 2, v4
    v_add_u32 v7, s37, v7""")
    for t in range(8):
        if t%2==0:
            e(f"""v_add_u32 v8, {t//2}, v7
            v_cvt_f32_u32 v12, v8
            v_mul_f32 v16, v12, v9
            v_cmp_eq_u32 s[40:41], 0, v8
            v_mov_b32 v17, 288
            v_cmp_eq_u32 s[42:43], v17, v8
            v_cmp_lt_u32 s[44:45], v17, v8
            s_or_b64 s[40:41], s[40:41], s[42:43]
            v_mov_b32 v17, {fbits(2/576/2048)}
            v_mov_b32 v18, {fbits(1/576/2048)}
            v_cndmask_b32 v17, v17, v18, s[40:41]
            v_cndmask_b32 v17, v17, 0, s[44:45]
            v_mov_b32 v10, 0""")
        else:
            e(f"""v_cndmask_b32 v17, v17, 0, s[40:41]
            v_mov_b32 v10, 0.25""")
        cosev(e,20+t,16,10,14,30,31)
        e(f"s_nop 0\nv_mul_f32 v{20+t}, v{20+t}, v17")
    for t in range(4): e(f"v_cvt_pk_bf16_f32 v{28+t}, v{20+2*t}, v{21+2*t}")
    e(f"""s_lshl_b32 s37, s34, 10
    s_add_u32 s37, s37, {GF}
    v_lshlrev_b32 v18, 4, v2
    buffer_store_dwordx4 v[28:31], v18, s[8:11], s37 offen
    s_branch K0_GN""")
    e.lab("K0_GC")
    e("""s_sub_u32 s35, s34, 666
    s_cmp_ge_u32 s35, 24
    s_cbranch_scc1 K0_GTW
    s_cmp_ge_u32 s35, 8
    s_cbranch_scc1 K0_G64""")
    e(f"""s_and_b32 s36, s35, 3
    s_lshr_b32 s37, s35, 2
    s_lshl_b32 s36, s36, 3
    v_lshlrev_b32 v7, 2, v4
    v_add_u32 v7, s36, v7
    v_cvt_f32_u32 v9, v3
    s_mov_b32 s40, {fbits(1/32)}
    s_mov_b32 s41, {fbits(-32.0)}
    s_cmp_eq_u32 s37, 0
    s_cselect_b32 s42, 0, {fbits(0.25)}
    s_cselect_b32 s43, {fbits(-0.25)}, 0""")
    for t in range(8):
        e(f"v_add_u32 v8, {t//2}, v7\nv_cvt_f32_u32 v12, v8\nv_mul_f32 v16, v12, v9\nv_mov_b32 v10, s{42+t%2}")
        cosev(e,20+t,16,10,14,40,41)
    e("s_nop 0")
    for t in range(4): e(f"v_cvt_pk_bf16_f32 v{28+t}, v{20+2*t}, v{21+2*t}")
    e(f"""s_lshl_b32 s37, s35, 10
    s_add_u32 s37, s37, {CF32}
    v_lshlrev_b32 v18, 4, v2
    buffer_store_dwordx4 v[28:31], v18, s[8:11], s37 offen
    s_branch K0_GN""")
    e.lab("K0_G64")
    e(f"""s_sub_u32 s35, s35, 8
    s_and_b32 s36, s35, 3
    s_lshl_b32 s36, s36, 4
    s_lshr_b32 s37, s35, 3
    s_lshl_b32 s37, s37, 5
    v_add_u32 v9, s37, v3
    v_cvt_f32_u32 v9, v9
    v_lshlrev_b32 v7, 2, v4
    v_add_u32 v7, s36, v7
    s_mov_b32 s40, {fbits(1/64)}
    s_mov_b32 s41, {fbits(-64.0)}
    s_bitcmp1_b32 s35, 2
    s_cselect_b32 s42, {fbits(0.25)}, 0
    v_mov_b32 v10, s42""")
    for t in range(8):
        e(f"v_add_u32 v8, {8*(t>>2)+(t&3)}, v7\nv_cvt_f32_u32 v12, v8\nv_mul_f32 v16, v12, v9")
        cosev(e,20+t,16,10,14,40,41)
    e("s_nop 0")
    for t in range(4): e(f"v_cvt_pk_bf16_f32 v{28+t}, v{20+2*t}, v{21+2*t}")
    e(f"""s_lshl_b32 s37, s35, 10
    s_add_u32 s37, s37, {CF64}
    v_lshlrev_b32 v18, 4, v2
    buffer_store_dwordx4 v[28:31], v18, s[8:11], s37 offen
    s_branch K0_GN""")
    e.lab("K0_GTW")
    e(f"""s_sub_u32 s35, s35, 24
    s_lshr_b32 s36, s35, 1
    s_lshl_b32 s36, s36, 3
    v_lshlrev_b32 v7, 2, v4
    v_add_u32 v7, s36, v7
    v_cvt_f32_u32 v9, v3
    s_mov_b32 s40, {fbits(1/2048)}
    s_mov_b32 s41, {fbits(-2048.0)}
    s_bitcmp1_b32 s35, 0
    s_cselect_b32 s42, {fbits(0.25)}, 0
    v_mov_b32 v10, s42""")
    for t in range(4):
        e(f"v_add_u32 v8, {t}, v7\nv_cvt_f32_u32 v12, v8\nv_mul_f32 v16, v12, v9")
        cosev(e,20+t,16,10,14,40,41)
    e(f"""s_lshl_b32 s37, s35, 10
    s_add_u32 s37, s37, {CTW}
    v_lshlrev_b32 v18, 4, v2
    s_nop 0
    buffer_store_dwordx4 v[20:23], v18, s[8:11], s37 offen""")
    e.lab("K0_GN")
    e("s_add_u32 s34, s34, 448\ns_nop 1\ns_branch K0_GL")
    RED=110592
    e.lab("K0_LN")
    e("s_waitcnt vmcnt(0)")
    for j in range(36):
        e(f"v_lshlrev_b32 v{100+2*j}, 16, v{64+j}\nv_and_b32 v{101+2*j}, 0xffff0000, v{64+j}")
    e("v_add_f32 v6, v100, v101")
    for j in range(2,72): e(f"v_add_f32 v6, v6, v{100+j}") if j%2 else e(f"v_add_f32 v6, v6, v{100+j}")
    e(f"""s_lshl_b32 s36, s26, 10
    s_lshl_b32 s37, s27, 3
    s_add_u32 s37, s37, s36
    s_add_u32 s37, s37, {RED}
    v_lshlrev_b32 v7, 5, v3
    v_lshl_add_u32 v8, v4, 2, v7
    v_add_u32 v8, s37, v8
    s_add_u32 s36, s36, {RED}
    v_add_u32 v7, s36, v7
    ds_write_b32 v8, v6
    s_waitcnt lgkmcnt(0)
    s_barrier
    ds_read_b128 v[20:23], v7
    ds_read_b128 v[24:27], v7 offset:16
    s_waitcnt lgkmcnt(0)""")
    for j in range(1,8): e(f"v_add_f32 v20, v20, v{20+j}")
    e(f"v_mul_f32 v20, {fbits(1/576)}, v20")
    for j in range(72): e(f"v_sub_f32 v{100+j}, v{100+j}, v20")
    e("v_mul_f32 v6, v100, v100")
    for j in range(1,72): e(f"v_fmac_f32 v6, v{100+j}, v{100+j}")
    e("""ds_write_b32 v8, v6 offset:2048
    s_waitcnt lgkmcnt(0)
    s_barrier
    ds_read_b128 v[20:23], v7 offset:2048
    ds_read_b128 v[24:27], v7 offset:2064
    s_waitcnt lgkmcnt(0)""")
    for j in range(1,8): e(f"v_add_f32 v20, v20, v{20+j}")
    e(f"""v_mov_b32 v21, {fbits(1e-5)}
    v_fmac_f32 v21, {fbits(1/576)}, v20
    v_rsq_f32 v21, v21
    s_nop 0""")
    for j in range(72): e(f"v_mul_f32 v{100+j}, v{100+j}, v21")
    for j in range(36): e(f"v_cvt_pk_bf16_f32 v{64+j}, v{100+2*j}, v{101+2*j}")
    e(f"""s_cmp_lg_u32 s25, 0
    s_cbranch_scc1 K0_MM
    s_mul_i32 s36, s28, 36
    s_mul_i32 s37, s27, 9
    s_add_u32 s36, s36, s37
    s_lshl_b32 s36, s36, 10
    s_add_u32 s36, s36, {XN}
    v_lshlrev_b32 v18, 4, v2
    v_add_u32 v19, 4096, v18""")
    for c in range(9):
        e(f"buffer_store_dwordx4 v[{64+4*c}:{67+4*c}], v{18 if c<4 else 19}, s[8:11], s36 offen offset:{1024*(c%4)}" if c<8 else f"v_add_u32 v19, 4096, v19\nbuffer_store_dwordx4 v[{64+4*c}:{67+4*c}], v19, s[8:11], s36 offen")
    e.lab("K0_MM")
    e("""s_mul_i32 s36, s27, 9216
    v_lshlrev_b32 v18, 4, v2
    v_add_u32 v18, s36, v18
    v_add_u32 v19, 36864, v18
    v_add_u32 v17, 36864, v19""")
    for ft in range(3):
        for c in range(9): e(f"ds_read_b128 v[{172+4*c}:{175+4*c}], v{[18,19,17][ft]} offset:{1024*c}")
        for c in range(9):
            e(f"s_waitcnt lgkmcnt({8-c})")
            e(f"v_mfma_f32_32x32x16_bf16 v[{100+16*ft}:{115+16*ft}], v[{172+4*c}:{175+4*c}], v[{64+4*c}:{67+4*c}], {'0' if c==0 else f'v[{100+16*ft}:{115+16*ft}]'}")
    e("""s_barrier
    s_mul_i32 s36, s3, 0
    s_lshl_b32 s36, s26, 2
    s_add_u32 s36, s36, s27
    s_mul_i32 s36, s36, 12288
    v_lshlrev_b32 v18, 4, v2
    v_add_u32 v19, s36, v18
    s_nop 15""")
    for ft in range(3):
        for i in range(4): e(f"ds_write_b128 v19, v[{100+16*ft+4*i}:{103+16*ft+4*i}] offset:{(ft*4+i)*1024}")
    e("""s_waitcnt lgkmcnt(0)
    s_barrier
    s_mul_i32 s36, s26, 49152
    s_lshl_b32 s37, s27, 10
    s_add_u32 s36, s36, s37
    v_add_u32 v19, s36, v18
    v_add_u32 v17, 24576, v19""")
    for qq in range(4):
        for ft in range(3): e(f"ds_read_b128 v[{100+(qq*3+ft)*4}:{103+(qq*3+ft)*4}], v{19 if qq<2 else 17} offset:{(qq%2)*12288+ft*4096}")
    e("s_waitcnt lgkmcnt(0)")
    for ft in range(3):
        for r in range(4):
            for qq in range(1,4): e(f"v_add_f32 v{100+ft*4+r}, v{100+ft*4+r}, v{100+(qq*3+ft)*4+r}")
        e(f"v_cvt_pk_bf16_f32 v{20+2*ft}, v{100+ft*4}, v{101+ft*4}\nv_cvt_pk_bf16_f32 v{21+2*ft}, v{102+ft*4}, v{103+ft*4}")
    e(f"""s_mul_i32 s36, s25, 48
    s_lshl_b32 s37, s27, 2
    s_add_u32 s36, s36, s37
    s_lshl_b32 s36, s36, 13
    s_lshl_b32 s37, s29, 2
    s_add_u32 s36, s36, s37
    s_add_u32 s36, s36, {Y1T}
    v_lshlrev_b32 v18, 14, v4
    v_lshl_add_u32 v18, v3, 2, v18
    v_add_u32 v19, 8192, v18""")
    for ft in range(3):
        e(f"buffer_store_dword v{20+2*ft}, v18, s[8:11], s36 offen\nbuffer_store_dword v{21+2*ft}, v19, s[8:11], s36 offen\ns_add_u32 s36, s36, {16*8192}")
    e("s_waitcnt vmcnt(0)\ns_endpgm")
    e.lab("K0_WT")
    BL=64*578
    e(f"""s_sub_u32 s24, s2, 224
    s_mov_b32 s12, s20
    s_mov_b32 s13, s21
    s_mov_b32 s14, {2048*578}
    s_mov_b32 s16, s22
    s_mov_b32 s17, s23
    s_mov_b32 s18, {2048*578}
    s_mov_b32 s19, 0x00020000
    s_mul_i32 s25, s24, {BL}
    v_lshlrev_b32 v5, 4, v0
    s_lshl_b32 s26, s3, 10""")
    for m in range(2):
        for it in range(5):
            e(f"""s_add_u32 m0, s26, {m*40960+it*8192}
            s_add_u32 s27, s25, {it*8192}
            buffer_load_dwordx4 v5, s[{12+4*m}:{15+4*m}], s27 offen lds""")
    e(f"""s_lshl_b32 s28, s3, 1
    v_add_u32 v6, s28, v4
    v_mul_u32_u24 v7, 578, v3
    v_lshl_add_u32 v7, v6, 1, v7
    s_lshr_b32 s29, s24, 2
    s_lshl_b32 s29, s29, 1
    s_and_b32 s33, s24, 1
    s_add_u32 s29, s29, s33
    s_lshl_b32 s29, s29, 9
    s_bfe_u32 s33, s24, 0x10001
    s_lshl_b32 s33, s33, 8
    s_add_u32 s29, s29, s33
    s_add_u32 s29, s29, {WT}
    v_lshlrev_b32 v8, 13, v6
    v_lshl_add_u32 v8, v3, 3, v8
    s_waitcnt vmcnt(0)
    s_barrier
    s_movk_i32 s44, 296
    s_mov_b32 s34, 0""")
    e.lab("K0_WL")
    e(f"""ds_read_u16 v10, v7
    ds_read_u16 v12, v7 offset:40960
    ds_read_u16 v11, v7 offset:{32*578}
    ds_read_u16 v13, v7 offset:{40960+32*578}
    v_cmp_gt_u32 vcc, 289, v6
    v_cmp_gt_u32 s[40:41], s44, v6
    s_waitcnt lgkmcnt(0)
    v_lshl_or_b32 v10, v12, 16, v10
    v_lshl_or_b32 v11, v13, 16, v11
    v_cndmask_b32 v10, 0, v10, vcc
    v_cndmask_b32 v11, 0, v11, vcc
    s_and_saveexec_b64 s[42:43], s[40:41]
    buffer_store_dwordx2 v[10:11], v8, s[8:11], s29 offen
    s_mov_b64 exec, s[42:43]
    v_add_u32 v6, 16, v6
    v_add_u32 v7, 32, v7
    v_add_u32 v8, {16*8192}, v8
    s_add_u32 s34, s34, 1
    s_cmp_lt_u32 s34, 19
    s_cbranch_scc1 K0_WL
    s_waitcnt vmcnt(0)""")
    e.lab("K0_END")
    e("s_endpgm")
    return e.text()
```

```python
from gen_common import *
from gen_gemm import mainloop
from gen_fft import fft
VA=4; VB=6
def k2():
    e=E(); head(e,"k2_kernel")
    STG=26624; NST=3; WOFF=8192
    e(f"""s_cmp_ge_u32 s2, 293
    s_cbranch_scc1 K2_END
    s_load_dwordx2 s[6:7], s[0:1], 72
    s_load_dwordx2 s[20:21], s[0:1], 48
    v_lshrrev_b32 v1, 6, v0
    v_and_b32 v2, 63, v0
    s_nop 0
    v_readfirstlane_b32 s3, v1
    s_waitcnt lgkmcnt(0)""")
    srd(e,8,6,WS_SIZE); srd(e,12,20,576*4608*2)
    e("s_cmp_ge_u32 s2, 256\ns_cbranch_scc1 K2_FFT")
    e(f"""s_and_b32 s24, s2, 7
    s_lshr_b32 s25, s2, 4
    s_bfe_u32 s28, s2, 0x10003
    v_bfe_u32 v8, v2, 4, 1
    v_lshrrev_b32 v9, 5, v2
    v_bfe_u32 v5, v2, 2, 2
    v_and_b32 v10, 1, v2
    v_bfe_u32 v11, v2, 1, 1
    v_lshlrev_b32 v10, 4, v10
    v_lshl_or_b32 v10, v11, 3, v10
    v_lshl_add_u32 v5, v9, 3, v5
    v_mul_u32_u24 v5, 576, v5
    v_add_u32 v5, v5, v10
    v_lshl_add_u32 v5, v8, 5, v5
    v_add_u32 v5, {WOFF}, v5
    s_and_b32 s26, s3, 3
    s_lshr_b32 s27, s3, 2
    s_mul_i32 s29, s27, 320
    v_add_u32 v5, s29, v5
    v_mov_b32 v4, v5
    v_lshlrev_b32 v7, 4, v2
    s_lshl_b32 s29, s26, 11
    v_add_u32 v7, s29, v7
    v_mov_b32 v6, v7
    s_mov_b32 s30, 0
    s_mov_b32 s32, 0
    s_mul_i32 s38, s24, {576*1152}
    s_mul_i32 s39, s28, 576
    s_add_u32 s38, s38, s39""")
    def wpieces(e, regs, start):
        for p,r in enumerate(regs):
            e(f"""v_add_u32 v20, {64*p}, v2
            v_add_u32 v20, s39, v20
            v_mul_u32_u24 v21, 1821, v20
            v_lshrrev_b32 v21, 16, v21
            v_mul_u32_u24 v22, 36, v21
            v_sub_u32 v22, v20, v22
            v_mul_u32_u24 v21, 1152, v21
            v_lshl_add_u32 v{r}, v22, 4, v21""")
    e("s_cmp_eq_u32 s27, 1\ns_cbranch_scc1 K2_B")
    for ty,(nA,a0) in enumerate([(5,0),(4,5)]):
        tag="K2A" if ty==0 else "K2B"
        if ty==1: e.lab("K2_B")
        adv=[f"s_add_u32 s38, s38, {32*1152}", f"s_add_u32 s32, s32, {STG}", f"s_cmp_eq_u32 s32, {STG*NST}", "s_cselect_b32 s32, 0, s32"]
        if ty==0:
            e(f"""s_lshl_b32 s33, s25, 2
            s_add_u32 s33, s33, s26
            s_mul_i32 s33, s33, 288
            s_mul_i32 s34, s24, 36
            s_add_u32 s33, s33, s34
            s_lshl_b32 s33, s33, 10
            s_add_u32 s33, s33, {HF}
            v_lshlrev_b32 v1, 4, v2
            s_lshl_b32 s35, s26, 11
            s_lshl_b32 s39, s26, 6
            s_lshl_b32 s34, s26, 10
            s_add_u32 s34, s34, {WOFF}""")
            wpieces(e,[3],0)
            dmas=["s_add_u32 m0, s32, s35","s_add_u32 s37, s33, 1024\nbuffer_load_dwordx4 v1, s[8:11], s33 offen lds",
                  "s_add_u32 m0, m0, 1024","s_add_u32 s33, s33, 2048\nbuffer_load_dwordx4 v1, s[8:11], s37 offen lds",
                  "s_add_u32 m0, s32, s34","s_nop 0\nbuffer_load_dwordx4 v3, s[12:15], s38 offen lds"]+adv
            nvm=3
        else:
            e(f"""s_mul_i32 s39, s26, 224
            s_add_u32 s39, s39, 256
            s_lshl_b32 s34, s39, 4
            s_add_u32 s34, s34, {WOFF}""")
            RG=[1,3,112,113]; wpieces(e,RG,0)
            dmas=["s_add_u32 s36, s32, s34"]
            for p in range(4):
                dmas.append(f"s_add_u32 m0, s36, {p*1024}")
                if p<3: dmas.append(f"s_nop 0\nbuffer_load_dwordx4 v{RG[p]}, s[12:15], s38 offen lds")
                else: dmas.append(f"s_mov_b32 exec_hi, 0\nbuffer_load_dwordx4 v{RG[p]}, s[12:15], s38 offen lds\ns_mov_b32 exec_hi, -1")
            dmas+=adv
            nvm=4
        for _ in range(NST):
            for x in dmas: e(x)
        FR=8; nB=1; inpl=2 if ty==0 else 0
        ACC=48
        for r in range(16*nA): e(f"v_mov_b32 v{ACC+r}, 0")
        mainloop(e,tag,nA,nB,NST,STG,18,lambda a,q,j:(16*q+4*j)*576+64*a,lambda b,q:q*1024,dmas,nvm,ACC,FR,VA,VB,30,31,inplace=inpl)
        e(f"""s_waitcnt vmcnt(0)
        s_lshl_b32 s33, s24, 6
        s_lshl_b32 s34, s25, 2
        s_add_u32 s33, s33, s34
        s_add_u32 s33, s33, s26
        s_mul_i32 s33, s33, 18
        s_mul_i32 s34, s28, 9
        s_add_u32 s33, s33, s34
        s_add_u32 s33, s33, {a0}
        s_lshl_b32 s33, s33, 11
        s_add_u32 s33, s33, {PF}
        v_and_b32 v1, 63, v0
        v_lshlrev_b32 v1, 4, v1
        s_nop 7""")
        for a in range(nA):
            d=ACC+16*a; o=8+8*(a%2)
            for t in range(8): e(f"v_cvt_pk_bf16_f32 v{o+t}, v{d+2*t}, v{d+2*t+1}")
            e(f"buffer_store_dwordx4 v[{o}:{o+3}], v1, s[8:11], s33 offen\nbuffer_store_dwordx4 v[{o+4}:{o+7}], v1, s[8:11], s33 offen offset:1024\ns_add_u32 s33, s33, 2048")
        e("s_waitcnt vmcnt(0)\ns_endpgm")
    fft(e)
    e.lab("K2_END"); e("s_endpgm")
    return e.text()
```

```python
from gen_common import *
def k3():
    e=E(); head(e,"k3_kernel")
    e(f"""s_cmp_ge_u32 s2, 576
    s_cbranch_scc1 K3_END
    s_load_dwordx2 s[6:7], s[0:1], 72
    s_load_dwordx2 s[4:5], s[0:1], 0
    s_load_dwordx2 s[20:21], s[0:1], 56
    s_mul_i32 s24, s2, 7282
    s_lshr_b32 s24, s24, 16
    s_mul_i32 s25, s24, 9
    s_sub_u32 s25, s2, s25
    v_lshlrev_b32 v1, 4, v0
    s_waitcnt lgkmcnt(0)""")
    srd(e,8,6,WS_SIZE); srd(e,12,4,2048*1152); srd(e,16,20,2048*1152)
    e(f"""s_mul_i32 s26, s24, {37*1024}
    s_add_u32 s26, s26, {ZF}
    s_mul_i32 s27, s25, {2*37*1024}
    s_add_u32 s27, s27, {GF}
    s_add_u32 s28, s27, {37*1024}
    s_mul_i32 s29, s24, 18
    s_lshl_b32 s30, s25, 1
    s_add_u32 s29, s29, s30
    s_lshl_b32 s29, s29, 11
    s_add_u32 s29, s29, {PF}
    v_and_b32 v2, 31, v0
    v_lshrrev_b32 v3, 5, v0
    s_lshl_b32 s30, s24, 5
    v_add_u32 v2, s30, v2
    v_mul_u32_u24 v2, 1152, v2
    v_lshl_add_u32 v2, v3, 4, v2
    s_lshl_b32 s30, s25, 7""")
    for a in range(2):
        for hf in range(2): e(f"buffer_load_dwordx4 v[{8+8*a+4*hf}:{11+8*a+4*hf}], v2, s[12:15], s30 offen offset:{64*a+32*hf}")
    D=12; FB=96
    def ld(c):
        b=FB+12*(c%D)
        e(f"""buffer_load_dwordx4 v[{b}:{b+3}], v1, s[8:11], s26 offen
        buffer_load_dwordx4 v[{b+4}:{b+7}], v1, s[8:11], s27 offen
        buffer_load_dwordx4 v[{b+8}:{b+11}], v1, s[8:11], s28 offen
        s_add_u32 s26, s26, 1024
        s_add_u32 s27, s27, 1024
        s_add_u32 s28, s28, 1024""")
    def ldp(x):
        b=24+16*(x%2)
        e(f"""buffer_load_dwordx4 v[{b}:{b+3}], v1, s[8:11], s29 offen
        buffer_load_dwordx4 v[{b+4}:{b+7}], v1, s[8:11], s29 offen offset:1024
        buffer_load_dwordx4 v[{b+8}:{b+11}], v1, s[8:11], s29 offen offset:2048
        buffer_load_dwordx4 v[{b+12}:{b+15}], v1, s[8:11], s29 offen offset:3072
        s_add_u32 s29, s29, {64*18*2048}""")
    for c in range(D): ld(c)
    A0,A1=56,72
    for c in range(37):
        rem=min(37,c+D)-c-1
        e(f"s_waitcnt vmcnt({min(63,3*rem)})")
        b=FB+12*(c%D)
        for a,d in enumerate([A0,A1]):
            e(f"v_mfma_f32_32x32x16_bf16 v[{d}:{d+15}], v[{b+4+4*a}:{b+7+4*a}], v[{b}:{b+3}], {'0' if c==0 else f'v[{d}:{d+15}]'}")
        if c+D<37: ld(c+D)
    ldp(0); ldp(1)
    e("s_nop 7")
    def addp(b):
        for a,d in enumerate([A0,A1]):
            for hf in range(2):
                for t in range(4):
                    r=b+8*a+4*hf+t; o=d+8*hf+2*t
                    e(f"v_lshlrev_b32 v4, 16, v{r}\nv_and_b32 v5, 0xffff0000, v{r}\nv_add_f32 v{o}, v{o}, v4\nv_add_f32 v{o+1}, v{o+1}, v5")
    addp(8)
    for x in range(8):
        e(f"s_waitcnt vmcnt({4 if x<7 else 0})")
        addp(24+16*(x%2))
        if x+2<8: ldp(x+2)
    for a,d in enumerate([A0,A1]):
        for hf in range(2):
            o=8+8*a+4*hf
            for t in range(4): e(f"v_cvt_pk_bf16_f32 v{o+t}, v{d+8*hf+2*t}, v{d+8*hf+2*t+1}")
            e(f"buffer_store_dwordx4 v[{o}:{o+3}], v2, s[16:19], s30 offen offset:{64*a+32*hf}")
    e("s_waitcnt vmcnt(0)")
    e.lab("K3_END"); e("s_endpgm")
    return e.text()
```

```python
import sys
from gen_common import *
from gen_k0 import k0
from gen_gemm import k1
from gen_k2 import k2
from gen_k3 import k3
ref=open('parallel_sum__spectral_gfnet__glu_gated_geglu__prompt.s.ref').read()
hdr=''.join(l+'\n' for l in ref.split('\n')[:11])
launch="""; @launch kernel=k0_kernel grid=(256,1,1) block=(512,1,1) lds=114688
; @launch kernel=k1_kernel grid=(256,1,1) block=(512,1,1) lds=140288
; @launch kernel=k2_kernel grid=(293,1,1) block=(512,1,1) lds=79872
; @launch kernel=k3_kernel grid=(576,1,1) block=(64,1,1) lds=0
"""
out=hdr+launch+'.amdgcn_target "amdgcn-amd-amdhsa--gfx950"\n.text\n'+k0()+k1()+k2()+k3()
out+='.section .rodata,"a"\n.p2align 6\n'+desc("k0_kernel",208)+".p2align 6\n"+desc("k1_kernel",256)+".p2align 6\n"+desc("k2_kernel",128)+".p2align 6\n"+desc("k3_kernel",240)
dst=sys.argv[1] if len(sys.argv)>1 else 'parallel_sum__spectral_gfnet__glu_gated_geglu__prompt.s'
open(dst,'w').write(out)
print("written",len(out))
```

```python
XN=0x0; Y1T=0x240000; WT=0x4E0000; ZF=0x730000; GF=0x980000; CF32=0xA30000; CF64=0xA32000; CTW=0xA36000
HF=0x1000000; PF=0x2300000
WS_SIZE=0x10000000
class E:
    def __init__(s): s.l=[]
    def __call__(s, t):
        for x in t.strip('\n').split('\n'): s.l.append('    '+x.strip())
    def lab(s, n): s.l.append(n+':')
    def text(s): return '\n'.join(s.l)+'\n'
def srd(e, d, src_lo, size):
    e(f"s_mov_b32 s{d}, s{src_lo}\ns_mov_b32 s{d+1}, s{src_lo+1}\ns_mov_b32 s{d+2}, {size}\ns_mov_b32 s{d+3}, 0x00020000")
def head(e, name):
    e.l.append(f".globl {name}\n.p2align 8\n.type {name},@function\n{name}:")
def desc(name, vg, sg=100):
    acc=(vg+3)//4*4
    return f""".amdhsa_kernel {name}
  .amdhsa_next_free_vgpr {vg}
  .amdhsa_next_free_sgpr {sg}
  .amdhsa_accum_offset {acc}
  .amdhsa_group_segment_fixed_size 0
  .amdhsa_kernarg_size 80
  .amdhsa_user_sgpr_count 2
  .amdhsa_user_sgpr_kernarg_segment_ptr 1
  .amdhsa_system_sgpr_workgroup_id_x 1
.end_amdhsa_kernel
"""
def fbits(x):
    import struct; return '0x%08x'%struct.unpack('<I',struct.pack('<f',x))[0]
def cosev(e, vd, vx, voff, vt, sInv, sNegN):
    e(f"""v_mul_f32 v{vt}, s{sInv}, v{vx}
    v_rndne_f32 v{vt}, v{vt}
    v_fma_f32 v{vt}, s{sNegN}, v{vt}, v{vx}
    v_fma_f32 v{vt}, s{sInv}, v{vt}, v{voff}
    v_cos_f32 v{vd}, v{vt}""")

import os
STAMP='stamp' in os.environ.get('OPT','').split(',')
def stamp(e, idx):
    if STAMP: e(f"s_memtime s[{64+4*idx}:{65+4*idx}]\ns_memrealtime s[{66+4*idx}:{67+4*idx}]\ns_waitcnt lgkmcnt(0)")
def stamp_out(e, n, wg, tagn):
    if not STAMP: return
    e(f"""s_cmp_lg_u32 s2, {wg}
    s_cbranch_scc1 ST_{tagn}
    s_cmp_lg_u32 s3, {os.environ.get("SWAVE","0")}
    s_cbranch_scc1 ST_{tagn}
    s_load_dwordx2 s[4:5], s[0:1], 64
    s_waitcnt lgkmcnt(0)
    s_mov_b32 s6, 256
    s_mov_b32 s7, 0x00020000
    v_mov_b32 v0, 0""")
    for i in range(1,n):
        e(f"s_sub_u32 s60, s{64+4*i}, s64\ns_sub_u32 s61, s{66+4*i}, s66\nv_mov_b32 v2, s60\nv_mov_b32 v3, s61\nbuffer_store_dwordx2 v[2:3], v0, s[4:7], 0 offen offset:{TAGOFF.get(tagn,0)+8*(i-1)}")
    e("s_waitcnt vmcnt(0)")
    e.lab(f"ST_{tagn}")
TAGOFF={'FFT':64,'K0W':64}
```

```python
from gen_common import *
def mf(e,d,a,b,first): e(f"v_mfma_f32_32x32x16_bf16 v[{d}:{d+15}], v[{a}:{a+3}], v[{b}:{b+3}], {'0' if first else f'v[{d}:{d+15}]'}")
def fft(e):
    e.lab("K2_FFT")
    stamp(e,0)
    RE,IM=80,96
    LF32,LF64,LTW,LTR=0,8192,24576,40960
    e(f"""s_cmp_ge_u32 s3, 4
    s_cbranch_scc1 K2_END
    s_setprio {os.environ.get('FPRIO','0')}
    s_sub_u32 s24, s2, {256 if os.environ.get('FFTLAST','') else 0}
    s_lshl_b32 s25, s24, 2
    s_add_u32 s25, s25, s3
    v_and_b32 v3, 31, v2
    v_lshrrev_b32 v1, 5, v2
    v_lshlrev_b32 v4, 10, v1
    v_lshl_add_u32 v4, v3, 2, v4
    v_lshlrev_b32 v5, 4, v2
    v_lshlrev_b32 v6, 3, v2
    s_lshl_b32 s26, s25, 13
    s_add_u32 s27, s26, {Y1T}
    s_add_u32 s28, s27, 4096
    s_add_u32 s29, s26, {WT}
    s_mul_i32 s33, s3, 10240
    s_add_u32 s34, s33, {CF32}
    s_mul_i32 s36, s3, 4608
    s_add_u32 s36, s36, {LTR}""")
    for p in range(10):
        e(f"s_add_u32 m0, s33, {p*1024}\ns_add_u32 s37, s34, {p*1024}\nbuffer_load_dwordx4 v5, s[8:11], s37 offen lds")
    for mt in range(2):
        for q in range(4):
            for ee in range(4):
                e(f"buffer_load_dword v{16+16*mt+4*q+ee}, v4, s[8:11], s{27+(q>>1)} offen offset:{(q&1)*2048+ee*256+mt*128}")
    WB=[112,64]
    for u in range(2):
        for i in range(4):
            for rp in range(2):
                pp=(u*4+i)*2+rp
                b=WB[u]+4*i+2*rp
                e(f"s_add_u32 s37, s29, {(pp>>3)*4096}\nbuffer_load_dwordx2 v[{b}:{b+1}], v6, s[8:11], s37 offen offset:{(pp&7)*512}")
    def ldfr(off, n=4):
        for p in range(n): e(f"ds_read_b128 v[{48+4*p}:{51+4*p}], v5 offset:{off+p*1024}")
        e("s_waitcnt lgkmcnt(0)")
    def twiddle(u, conj, sink):
        def ld(i):
            tb=48+8*(i&1); pp=(u*4+i)*2
            e(f"ds_read_b128 v[{tb}:{tb+3}], v5 offset:{LTW+pp*1024}\nds_read_b128 v[{tb+4}:{tb+7}], v5 offset:{LTW+pp*1024+1024}")
        ld(0); ld(1)
        for i in range(4):
            tb=48+8*(i&1)
            e(f"s_waitcnt lgkmcnt({2 if (i<3 and not conj) else 0})")
            for r in range(4):
                dr,di=RE+4*i+r,IM+4*i+r; wr,wi=tb+r,tb+4+r
                if not conj:
                    e(f"v_mul_f32 v{8+r}, v{dr}, v{wr}\nv_mul_f32 v{12+r}, v{dr}, v{wi}\nv_fma_f32 v{8+r}, -v{di}, v{wi}, v{8+r}\nv_fma_f32 v{12+r}, v{di}, v{wr}, v{12+r}")
                else:
                    e(f"v_mul_f32 v{8+r}, v{dr}, v{wr}\nv_mul_f32 v{12+r}, v{di}, v{wr}\nv_fma_f32 v{8+r}, v{di}, v{wi}, v{8+r}\nv_fma_f32 v{12+r}, -v{dr}, v{wi}, v{12+r}")
            if i<2: ld(i+2)
            sink(i)
    TRE=lambda q:16+4*(q&1)+16*(q>>1)
    TIM=lambda q:24+4*(q&1)+16*(q>>1)
    e("s_waitcnt vmcnt(16)\ns_barrier")
    stamp(e,1)
    for mt in range(2):
        ldfr(LF32)
        for q in range(4): mf(e,RE,16+16*mt+4*q,48+4*q,q==0)
        ldfr(LF32+4096)
        for q in range(4): mf(e,IM,16+16*mt+4*q,48+4*q,q==0)
        e("s_nop 7\ns_nop 3")
        def sink(i,mt=mt):
            q=2*mt+(i>>1); o=2*(i&1)
            e(f"v_cvt_pk_bf16_f32 v{TRE(q)+o}, v8, v9\nv_cvt_pk_bf16_f32 v{TRE(q)+o+1}, v10, v11\nv_cvt_pk_bf16_f32 v{TIM(q)+o}, v12, v13\nv_cvt_pk_bf16_f32 v{TIM(q)+o+1}, v14, v15")
        twiddle(mt,False,sink)
    stamp(e,2)
    def neg(regs):
        for r in regs: e(f"v_xor_b32 v{r}, 0x80008000, v{r}")
        e("s_nop 1")
    TIMR=[TIM(q)+t for q in range(4) for t in range(4)]
    for u in range(2):
        ldfr(LF64+u*8192)
        for q in range(4): mf(e,RE,48+4*q,TRE(q),q==0)
        if u==1: neg(TIMR)
        for q in range(4): mf(e,IM,48+4*q,TIM(q),q==0)
        if u==0:
            ldfr(LF64+u*8192+4096)
            for q in range(4): mf(e,IM,48+4*q,TRE(q),False)
            neg(TIMR)
            for q in range(4): mf(e,RE,48+4*q,TIM(q),False)
        else:
            ldfr(LF64+u*8192+4096)
            for q in range(4): mf(e,IM,48+4*q,TRE(q),False)
            neg(TIMR)
            for q in range(4): mf(e,RE,48+4*q,TIM(q),False)
        e("s_nop 7\ns_nop 3\ns_waitcnt vmcnt(0)")
        wb=WB[u]
        for hf in range(2):
            for ii in range(2):
                for r in range(4):
                    w=wb+4*(2*hf+ii)+r
                    e(f"v_lshlrev_b32 v{48+8*ii+r}, 16, v{w}\nv_and_b32 v{52+8*ii+r}, 0xffff0000, v{w}")
            for ii in range(2):
                i=2*hf+ii
                for r in range(4):
                    dr,di=RE+4*i+r,IM+4*i+r; wr,wi=48+8*ii+r,52+8*ii+r
                    e(f"v_mul_f32 v{8+r}, v{dr}, v{wr}\nv_mul_f32 v{12+r}, v{dr}, v{wi}\nv_fma_f32 v{8+r}, -v{di}, v{wi}, v{8+r}\nv_fma_f32 v{12+r}, v{di}, v{wr}, v{12+r}")
                o=wb+8*hf+2*ii
                e(f"v_cvt_pk_bf16_f32 v{o}, v8, v9\nv_cvt_pk_bf16_f32 v{o+1}, v10, v11\nv_cvt_pk_bf16_f32 v{o+4}, v12, v13\nv_cvt_pk_bf16_f32 v{o+5}, v14, v15")
    stamp(e,3)
    VRE=lambda q:WB[q>>1]+8*(q&1)
    VIM=lambda q:WB[q>>1]+8*(q&1)+4
    VRER=[VRE(q)+t for q in range(4) for t in range(4)]
    e(f"""v_mul_u32_u24 v7, 576, v1
    v_lshl_add_u32 v7, v3, 2, v7
    v_add_u32 v7, s36, v7
    v_mul_u32_u24 v4, 144, v3
    v_lshl_add_u32 v4, v1, 4, v4
    v_add_u32 v4, s36, v4""")
    for mt in range(2):
        ldfr(LF64+mt*8192)
        if mt==0:
            for q in range(4): mf(e,RE,48+4*q,VRE(q),q==0)
            for q in range(4): mf(e,IM,48+4*q,VIM(q),q==0)
            ldfr(LF64+mt*8192+4096)
            for q in range(4): mf(e,RE,48+4*q,VIM(q),False)
            neg(VRER)
            for q in range(4): mf(e,IM,48+4*q,VRE(q),False)
        else:
            for q in range(4): mf(e,IM,48+4*q,VIM(q),q==0)
            neg(VRER)
            for q in range(4): mf(e,RE,48+4*q,VRE(q),q==0)
            ldfr(LF64+mt*8192+4096)
            for q in range(4): mf(e,RE,48+4*q,VIM(q),False)
            neg(VRER)
            for q in range(4): mf(e,IM,48+4*q,VRE(q),False)
        e("s_nop 7\ns_nop 3")
        def sink(i):
            for r in range(4):
                e(f"v_cvt_pk_bf16_f32 v{8+r}, v{12+r}, v{8+r}\nds_write_b32 v7, v{8+r} offset:{(8*i+r)*144}")
        twiddle(mt,True,sink)
        e("s_waitcnt lgkmcnt(0)")
        for q in range(4): e(f"ds_read_b128 v[{16+4*q}:{19+4*q}], v4 offset:{32*q}")
        ldfr(LF32+4096)
        for q in range(4): mf(e,RE,48+4*q,16+4*q,q==0)
        ldfr(LF32)
        for q in range(4): mf(e,IM,48+4*q,16+4*q,q==0)
        e("s_nop 7\ns_nop 3")
        for r in range(16): e(f"v_cvt_pk_bf16_f32 v{32+r if mt==0 else 16+r}, v{RE+r}, v{IM+r}")
    stamp(e,4)
    e(f"""s_barrier
    s_lshl_b32 s37, s3, 2
    v_lshlrev_b32 v7, 12, v1
    v_lshl_add_u32 v7, v3, 4, v7
    v_add_u32 v7, s37, v7
    v_add_u32 v8, 16384, v7""")
    for mt,zb in enumerate([32,16]):
        for i in range(4):
            for r in range(4):
                off=(8*(i&1)+r)*1024+mt*512
                e(f"ds_write_b32 v{7 if i<2 else 8}, v{zb+4*i+r} offset:{off}")
    e(f"""s_waitcnt lgkmcnt(0)
    s_barrier
    s_lshl_b32 s37, s3, 13
    v_add_u32 v7, s37, v5
    v_mul_u32_u24 v5, {37*1024}, v1
    v_lshl_add_u32 v5, v3, 4, v5
    s_lshl_b32 s38, s3, 4
    s_mul_i32 s38, s38, 37
    s_lshr_b32 s39, s24, 1
    s_add_u32 s38, s38, s39
    s_lshl_b32 s38, s38, 10
    s_and_b32 s39, s24, 1
    s_lshl_b32 s39, s39, 9
    s_add_u32 s38, s38, s39
    s_add_u32 s38, s38, {ZF}""")
    for j in range(8): e(f"ds_read_b128 v[{16+4*j}:{19+4*j}], v7 offset:{j*1024}")
    for j in range(8):
        e(f"s_waitcnt lgkmcnt({7-j})\nbuffer_store_dwordx4 v[{16+4*j}:{19+4*j}], v5, s[8:11], s38 offen\ns_add_u32 s38, s38, {2*37*1024}")
    stamp(e,5)
    e("s_waitcnt vmcnt(0)")
    stamp(e,6)
    stamp_out(e,7,(256 if os.environ.get('FFTLAST','') else 0)+int(os.environ.get("SWG","0"))%74,"FFT")
    e("s_endpgm")
```

```python
from gen_common import *
import os
OPT=os.environ.get('OPT','').split(',')
def mainloop(e, tag, nA, nB, NST, STG, NCH, aoff, boff, dmas, nvm, ACC, FR, vA, vB, sStage, sIt, inplace=0, tail=()):
    def rb(set_,b): return FR+set_*4*nB+4*b
    def ra(set_,a):
        base=FR+8*nB
        if a<inplace: return base+4*a
        return base+4*inplace+(set_*(nA-inplace)+(a-inplace))*4
    def rdA(set_,q,a):
        r=ra(set_,a)
        return [f"ds_read_b64_tr_b16 v[{r}:{r+1}], v{vA} offset:{aoff(a,q,0)}", f"ds_read_b64_tr_b16 v[{r+2}:{r+3}], v{vA} offset:{aoff(a,q,1)}"]
    def reads(set_, q, all_=False):
        L=[]
        for b in range(nB): L.append(f"ds_read_b128 v[{rb(set_,b)}:{rb(set_,b)+3}], v{vB} offset:{boff(b,q)}")
        for a in list(range(inplace,nA))+list(range(inplace)): L+=rdA(set_,q,a)
        return L
    def mfmas(set_):
        L=[]
        for a in range(nA):
            for b in range(nB):
                d=ACC+16*(a*nB+b); x=ra(set_,a); y=rb(set_,b)
                L.append(f"v_mfma_f32_32x32x16_bf16 v[{d}:{d+15}], v[{x}:{x+3}], v[{y}:{y+3}], v[{d}:{d+15}]")
        return L
    if 'nodma' in OPT: dmas=[x for x in dmas if 'buffer_load' not in x]
    def inter(M, O):
        if 'nomfma' in OPT: M=['s_nop 0']*len(M)
        if 'nolds' in OPT: O=[x for x in O if not x.startswith('ds_read')]
        n=len(M); k=0; lim=len(O)-2*inplace
        for i,m in enumerate(M):
            e(m)
            tgt=(len(O)*(i+1)+n-1)//n
            if i+1<inplace*nB: tgt=min(tgt,lim)
            while k<tgt: e(O[k]); k+=1
    e(f"s_waitcnt vmcnt({nvm*(NST-1)})\ns_barrier")
    for x in reads(0,0): e(x)
    e(f"s_mov_b32 s{sIt}, 0")
    e.lab(f"{tag}_LOOP")
    e("s_waitcnt lgkmcnt(0)")
    inter(mfmas(0), reads(1,1))
    e(f"""s_add_u32 s{sStage}, s{sStage}, {STG}
    s_cmp_eq_u32 s{sStage}, {STG*NST}
    s_cselect_b32 s{sStage}, 0, s{sStage}
    s_waitcnt vmcnt({nvm*(NST-2)}) lgkmcnt(0)
    s_barrier""")
    upd=[f"v_add_u32 v{vA}, s{sStage}, v{vA+1}", f"v_add_u32 v{vB}, s{sStage}, v{vB+1}"]
    for x in upd: e(x)
    pre=[]
    if tail and 'notail' not in OPT:
        pre=[f"s_cmp_lt_u32 s{sIt}, {NCH-NST}\n"+"\n".join(f"s_cselect_b32 s{r}, {sz}, 0" for r,sz in tail)]
    inter(mfmas(1), reads(0,0)[:2]+pre+dmas+reads(0,0)[2:])
    e(f"""s_add_u32 s{sIt}, s{sIt}, 1
    s_cmp_lt_u32 s{sIt}, {NCH}
    s_cbranch_scc1 {tag}_LOOP""")
    for r,sz in tail: e(f"s_mov_b32 s{r}, {sz}")

def gelu_mul(e, g, u, t0, t1):
    import math
    c = -2*math.sqrt(2/math.pi)*math.log2(math.e)
    return [f"v_mul_f32 v{t0}, v{g}, v{g}",
            f"v_fma_f32 v{t0}, v{t0}, s46, v52",
            f"v_mul_f32 v{t0}, v{t0}, v{g}",
            f"v_exp_f32 v{t0}, v{t0}",
            f"v_mul_f32 v{t1}, v{g}, v{u}",
            f"v_add_f32 v{t0}, 1.0, v{t0}",
            f"v_rcp_f32 v{t0}, v{t0}",
            None,
            f"v_mul_f32 v{g}, v{t1}, v{t0}"]

def k1():
    import math
    e=E(); head(e,"k1_kernel")
    stamp(e,0)
    STG=35072; NST=4; GOFF=16384; UOFF=GOFF+9216+128
    c=-2*math.sqrt(2/math.pi)*math.log2(math.e)
    e(f"""s_cmp_ge_u32 s2, 256
    s_cbranch_scc1 K1_END
    s_load_dwordx2 s[6:7], s[0:1], 72
    s_load_dwordx4 s[20:23], s[0:1], 32
    v_lshrrev_b32 v1, 6, v0
    v_and_b32 v2, 63, v0
    s_nop 0
    v_readfirstlane_b32 s3, v1
    s_and_b32 s24, s2, 7
    s_lshl_b32 s24, s24, 2
    s_bfe_u32 s25, s2, 0x20003
    s_add_u32 s24, s24, s25
    s_lshr_b32 s25, s2, 5
    s_mov_b32 s46, {fbits(c*0.044715)}
    s_mov_b32 s47, {fbits(c)}
    s_waitcnt lgkmcnt(0)""")
    srd(e,8,6,WS_SIZE); srd(e,12,20,576*4608*2); srd(e,16,22,576*4608*2)
    e(f"""v_bfe_u32 v3, v2, 4, 1
    v_lshrrev_b32 v4, 5, v2
    v_bfe_u32 v5, v2, 2, 2
    v_and_b32 v6, 1, v2
    v_bfe_u32 v7, v2, 1, 1
    v_lshlrev_b32 v6, 4, v6
    v_lshl_or_b32 v6, v7, 3, v6
    v_lshl_add_u32 v5, v4, 3, v5
    v_mul_u32_u24 v5, 288, v5
    v_add_u32 v5, v5, v6
    v_mul_u32_u24 v3, {UOFF-GOFF}, v3
    v_add_u32 v5, v5, v3
    v_add_u32 v11, {GOFF}, v5
    s_and_b32 s26, s3, 3
    s_lshr_b32 s27, s3, 2
    s_mul_i32 s28, s27, 160
    v_add_u32 v11, s28, v11
    v_mov_b32 v10, v11
    v_lshlrev_b32 v13, 4, v2
    s_lshl_b32 s28, s26, 12
    v_add_u32 v13, s28, v13
    v_mov_b32 v12, v13
    s_mov_b32 s30, 0
    s_mov_b32 s32, 0""")
    e("s_cmp_eq_u32 s27, 1\ns_cbranch_scc1 K1_B")
    for ty,(nA,a0) in enumerate([(5,0),(4,5)]):
        tag="K1A" if ty==0 else "K1B"
        if ty==1: e.lab("K1_B")
        if ty==0:
            e(f"""s_lshl_b32 s33, s25, 3
            s_lshl_b32 s34, s26, 1
            s_add_u32 s33, s33, s34
            s_mul_i32 s33, s33, {36*1024}
            s_add_u32 s33, s33, {XN}
            v_lshlrev_b32 v14, 4, v2
            v_add_u32 v15, {36*1024}, v14
            s_lshl_b32 s35, s26, 12""")
            dm=[]
            for p in range(4):
                dm.append(f"s_add_u32 m0, s36, {p*1024}")
                dm.append(f"buffer_load_dwordx4 v{14+(p>>1)}, s[8:11], s33 offen lds" if p%2==0 else f"s_add_u32 s37, s33, 1024\nbuffer_load_dwordx4 v{14+(p>>1)}, s[8:11], s37 offen lds")
            pre=["s_add_u32 s36, s32, s35"]
            post=["s_add_u32 s33, s33, 2048", f"s_add_u32 s32, s32, {STG}", f"s_cmp_eq_u32 s32, {STG*NST}", "s_cselect_b32 s32, 0, s32"]
            nvm=4
        else:
            e(f"""s_lshr_b32 s34, s26, 1
            s_and_b32 s35, s26, 1
            s_cmp_eq_u32 s34, 1
            s_cselect_b32 s40, s16, s12
            s_cselect_b32 s41, s17, s13
            s_mov_b32 s42, s14
            s_mov_b32 s43, s15
            s_mul_i32 s33, s24, 288
            s_mul_i32 s38, s35, 288""")
            for p in range(5):
                e(f"""v_add_u32 v20, {64*p}, v2
                v_add_u32 v20, s38, v20
                v_mul_u32_u24 v21, 3641, v20
                v_lshrrev_b32 v21, 16, v21
                v_mul_u32_u24 v22, 18, v21
                v_sub_u32 v22, v20, v22
                v_mul_u32_u24 v21, 9216, v21
                v_lshl_add_u32 v{14+p}, v22, 4, v21""")
            e(f"""s_mul_i32 s35, s35, 4608
            s_mul_i32 s34, s34, {UOFF-GOFF}
            s_add_u32 s35, s35, s34
            s_add_u32 s35, s35, {GOFF}""")
            dm=[]
            for p in range(5):
                dm.append(f"s_add_u32 m0, s36, {p*1024}")
                if p<4: dm.append(f"s_nop 0\nbuffer_load_dwordx4 v{14+p}, s[40:43], s33 offen lds")
                else: dm.append(f"s_mov_b32 exec_hi, 0\nbuffer_load_dwordx4 v{14+p}, s[40:43], s33 offen lds\ns_mov_b32 exec_hi, -1")
            pre=["s_add_u32 s36, s32, s35"]
            post=[f"s_add_u32 s33, s33, {32*9216}", f"s_add_u32 s32, s32, {STG}", f"s_cmp_eq_u32 s32, {STG*NST}", "s_cselect_b32 s32, 0, s32"]
            nvm=5
        dmas=pre+dm+post
        if ty==0: dmas=[x if not x.startswith("buffer_load") else "s_nop 0\n"+x for x in dmas]
        for _ in range(NST):
            for x in dmas: e(x)
        ACC=96; FR=24
        stamp(e,1)
        nB=2
        for r in range(16*nA*nB): e(f"v_mov_b32 v{ACC+r}, 0")
        mainloop(e,tag,nA,nB,NST,STG,18,lambda a,q,j:(16*q+4*j)*288+32*a,lambda b,q:b*2048+q*1024,dmas,nvm,ACC,FR,10,12,30,31,tail=[(10,WS_SIZE),(14,576*4608*2),(18,576*4608*2)])
        stamp(e,2)
        e(f"""s_waitcnt lgkmcnt(0)
        s_lshl_b32 s33, s25, 3
        s_lshl_b32 s34, s26, 1
        s_add_u32 s33, s33, s34
        s_mul_i32 s33, s33, 288
        s_mul_i32 s34, s24, 9
        s_add_u32 s33, s33, s34
        s_add_u32 s33, s33, {a0}
        s_lshl_b32 s33, s33, 10
        s_add_u32 s33, s33, {HF}
        v_lshlrev_b32 v14, 4, v2
        v_mov_b32 v52, s47
        s_nop 7""")
        for a in range(nA if 'noepi' not in OPT else 0):
            for b in range(nB):
                d=ACC+16*(a*nB+b)
                seqs=[gelu_mul(e,d+t,d+8+t,24+2*t,25+2*t) for t in range(8)]
                for st in range(9):
                    for t in range(8):
                        if seqs[t][st]: e(seqs[t][st])
                o=44+4*((a*nB+b)%2)
                for t in range(4): e(f"v_cvt_pk_bf16_f32 v{o+t}, v{d+2*t}, v{d+2*t+1}")
                e(f"s_add_u32 s34, s33, {(b*288+a)*1024}\nbuffer_store_dwordx4 v[{o}:{o+3}], v14, s[8:11], s34 offen")
        stamp(e,3)
        e("s_waitcnt vmcnt(0)")
        stamp(e,4)
        stamp_out(e,5,int(os.environ.get("SWG","0")),tag)
        e("s_endpgm")
    e.lab("K1_END"); e("s_endpgm")
    return e.text()
```

```python
from gen_common import *
def k0():
    e=E(); head(e,"k0_kernel")
    e("""s_cmp_ge_u32 s2, 256
    s_cbranch_scc1 K0_END
    s_load_dwordx2 s[4:5], s[0:1], 0
    s_load_dwordx2 s[6:7], s[0:1], 72
    s_load_dwordx4 s[20:23], s[0:1], 8
    v_lshrrev_b32 v1, 6, v0
    v_and_b32 v2, 63, v0
    s_nop 0
    v_readfirstlane_b32 s3, v1
    v_and_b32 v3, 31, v2
    v_lshrrev_b32 v4, 5, v2
    s_mov_b32 s30, %s
    s_mov_b32 s31, %s
    s_waitcnt lgkmcnt(0)"""%(fbits(1/576),fbits(-576.0)))
    srd(e,8,6,WS_SIZE); srd(e,12,4,2048*576*2)
    stamp(e,0)
    e("s_cmp_ge_u32 s2, 224\ns_cbranch_scc1 K0_WT")
    e("""s_and_b32 s24, s2, 31
    s_lshr_b32 s25, s2, 5
    s_and_b32 s26, s3, 1
    s_lshr_b32 s27, s3, 1
    s_lshl_b32 s28, s24, 1
    s_add_u32 s28, s28, s26
    s_lshl_b32 s29, s28, 5
    v_add_u32 v5, s29, v3
    v_mul_u32_u24 v5, 1152, v5
    v_lshl_add_u32 v5, v4, 4, v5
    s_mul_i32 s33, s27, 288""")
    for c in range(9): e(f"buffer_load_dwordx4 v[{64+4*c}:{67+4*c}], v5, s[12:15], s33 offen offset:{32*c}")
    e("s_cmp_ge_u32 s3, 6\ns_cbranch_scc1 K0_LN")
    e("""s_mul_i32 s34, s25, 3
    s_add_u32 s34, s34, s27
    s_lshl_b32 s34, s34, 5
    v_add_u32 v6, s34, v3
    v_lshrrev_b32 v7, 1, v6
    v_and_b32 v8, 1, v6
    v_cvt_f32_u32 v9, v7
    v_cvt_f32_u32 v10, v8
    v_mul_f32 v10, 0.25, v10
    v_cmp_ge_u32 vcc, 288, v7
    v_mov_b32 v11, 1.0
    v_mov_b32 v12, 0
    v_cndmask_b32 v11, 0, v11, vcc
    v_mov_b32 v19, %s
    v_mul_f32 v17, %s, v9
    s_mul_i32 s35, s26, 288
    v_lshlrev_b32 v15, 3, v4
    v_add_u32 v15, s35, v15
    v_cvt_f32_u32 v15, v15
    v_mul_f32 v16, v15, v9
    v_add_f32 v18, %s, v10"""%(fbits(-0.25),fbits(16.0),fbits(-0.25)))
    cosev(e,13,9,12,14,30,31)
    cosev(e,20,9,19,14,30,31)
    cosev(e,21,17,12,14,30,31)
    cosev(e,22,17,19,14,30,31)
    cosev(e,23,16,10,14,30,31)
    cosev(e,24,16,18,14,30,31)
    e("""s_nop 0
    v_mul_f32 v23, v23, v11
    v_mul_f32 v24, v24, v11
    v_add_f32 v15, v13, v13""")
    for fr in range(18):
        e("v_mul_f32 v25, v23, v13\nv_mul_f32 v34, v23, v21\nv_fma_f32 v25, -v24, v20, v25\nv_mul_f32 v35, v24, v21\nv_fma_f32 v26, v15, v25, -v23")
        e("v_fma_f32 v34, -v24, v22, v34\nv_fma_f32 v27, v15, v26, -v25\nv_fma_f32 v35, v23, v22, v35")
        e("v_fma_f32 v28, v15, v27, -v26")
        e(f"v_cvt_pk_bf16_f32 v{172+4*fr}, v23, v25")
        e("v_fma_f32 v29, v15, v28, -v27")
        e(f"v_cvt_pk_bf16_f32 v{173+4*fr}, v26, v27")
        e("v_fma_f32 v30, v15, v29, -v28\nv_mov_b32 v23, v34\nv_fma_f32 v31, v15, v30, -v29\nv_mov_b32 v24, v35")
        e(f"v_cvt_pk_bf16_f32 v{174+4*fr}, v28, v29\nv_cvt_pk_bf16_f32 v{175+4*fr}, v30, v31")
    e("s_branch K0_LN")
    e.lab("K0_GEN")
    e("""s_lshl_b32 s34, s2, 1
    s_add_u32 s34, s34, s3
    s_sub_u32 s34, s34, 6""")
    e.lab("K0_GL")
    e("""s_cmp_ge_u32 s34, 706
    s_cbranch_scc1 K0_DONE
    s_cmp_ge_u32 s34, 666
    s_cbranch_scc1 K0_GC""")
    e("""s_mul_i32 s35, s34, 1772
    s_lshr_b32 s35, s35, 16
    s_mul_i32 s36, s35, 37
    s_sub_u32 s36, s34, s36
    v_and_b32 v6, 0x13, v3
    v_bfe_u32 v7, v3, 2, 1
    v_lshl_or_b32 v6, v7, 3, v6
    v_bfe_u32 v7, v3, 3, 1
    v_lshl_or_b32 v6, v7, 2, v6
    s_lshl_b32 s37, s35, 5
    v_add_u32 v6, s37, v6
    v_cvt_f32_u32 v9, v6
    s_lshl_b32 s37, s36, 3
    v_lshlrev_b32 v7, 2, v4
    v_add_u32 v7, s37, v7""")
    for t in range(8):
        if t%2==0:
            e(f"""v_add_u32 v8, {t//2}, v7
            v_cvt_f32_u32 v12, v8
            v_mul_f32 v16, v12, v9
            v_cmp_eq_u32 s[40:41], 0, v8
            v_mov_b32 v17, 288
            v_cmp_eq_u32 s[42:43], v17, v8
            v_cmp_lt_u32 s[44:45], v17, v8
            s_or_b64 s[40:41], s[40:41], s[42:43]
            v_mov_b32 v17, {fbits(2/576/2048)}
            v_mov_b32 v18, {fbits(1/576/2048)}
            v_cndmask_b32 v17, v17, v18, s[40:41]
            v_cndmask_b32 v17, v17, 0, s[44:45]
            v_mov_b32 v10, 0""")
        else:
            e(f"""v_cndmask_b32 v17, v17, 0, s[40:41]
            v_mov_b32 v10, 0.25""")
        cosev(e,20+t,16,10,14,30,31)
        e(f"s_nop 0\nv_mul_f32 v{20+t}, v{20+t}, v17")
    for t in range(4): e(f"v_cvt_pk_bf16_f32 v{28+t}, v{20+2*t}, v{21+2*t}")
    e(f"""s_lshl_b32 s37, s34, 10
    s_add_u32 s37, s37, {GF}
    v_lshlrev_b32 v18, 4, v2
    buffer_store_dwordx4 v[28:31], v18, s[8:11], s37 offen
    s_branch K0_GN""")
    e.lab("K0_GC")
    e("""s_sub_u32 s35, s34, 666
    s_cmp_ge_u32 s35, 24
    s_cbranch_scc1 K0_GTW
    s_cmp_ge_u32 s35, 8
    s_cbranch_scc1 K0_G64""")
    e(f"""s_and_b32 s36, s35, 3
    s_lshr_b32 s37, s35, 2
    s_lshl_b32 s36, s36, 3
    v_lshlrev_b32 v7, 2, v4
    v_add_u32 v7, s36, v7
    v_cvt_f32_u32 v9, v3
    s_mov_b32 s40, {fbits(1/32)}
    s_mov_b32 s41, {fbits(-32.0)}
    s_cmp_eq_u32 s37, 0
    s_cselect_b32 s42, 0, {fbits(0.25)}
    s_cselect_b32 s43, {fbits(-0.25)}, 0""")
    for t in range(8):
        e(f"v_add_u32 v8, {t//2}, v7\nv_cvt_f32_u32 v12, v8\nv_mul_f32 v16, v12, v9\nv_mov_b32 v10, s{42+t%2}")
        cosev(e,20+t,16,10,14,40,41)
    e("s_nop 0")
    for t in range(4): e(f"v_cvt_pk_bf16_f32 v{28+t}, v{20+2*t}, v{21+2*t}")
    e(f"""s_lshl_b32 s37, s35, 10
    s_add_u32 s37, s37, {CF32}
    v_lshlrev_b32 v18, 4, v2
    buffer_store_dwordx4 v[28:31], v18, s[8:11], s37 offen
    s_branch K0_GN""")
    e.lab("K0_G64")
    e(f"""s_sub_u32 s35, s35, 8
    s_and_b32 s36, s35, 3
    s_lshl_b32 s36, s36, 4
    s_lshr_b32 s37, s35, 3
    s_lshl_b32 s37, s37, 5
    v_add_u32 v9, s37, v3
    v_cvt_f32_u32 v9, v9
    v_lshlrev_b32 v7, 2, v4
    v_add_u32 v7, s36, v7
    s_mov_b32 s40, {fbits(1/64)}
    s_mov_b32 s41, {fbits(-64.0)}
    s_bitcmp1_b32 s35, 2
    s_cselect_b32 s42, {fbits(0.25)}, 0
    v_mov_b32 v10, s42""")
    for t in range(8):
        e(f"v_add_u32 v8, {8*(t>>2)+(t&3)}, v7\nv_cvt_f32_u32 v12, v8\nv_mul_f32 v16, v12, v9")
        cosev(e,20+t,16,10,14,40,41)
    e("s_nop 0")
    for t in range(4): e(f"v_cvt_pk_bf16_f32 v{28+t}, v{20+2*t}, v{21+2*t}")
    e(f"""s_lshl_b32 s37, s35, 10
    s_add_u32 s37, s37, {CF64}
    v_lshlrev_b32 v18, 4, v2
    buffer_store_dwordx4 v[28:31], v18, s[8:11], s37 offen
    s_branch K0_GN""")
    e.lab("K0_GTW")
    e(f"""s_sub_u32 s35, s35, 24
    s_lshr_b32 s36, s35, 1
    s_lshl_b32 s36, s36, 3
    v_lshlrev_b32 v7, 2, v4
    v_add_u32 v7, s36, v7
    v_cvt_f32_u32 v9, v3
    s_mov_b32 s40, {fbits(1/2048)}
    s_mov_b32 s41, {fbits(-2048.0)}
    s_bitcmp1_b32 s35, 0
    s_cselect_b32 s42, {fbits(0.25)}, 0
    v_mov_b32 v10, s42""")
    for t in range(4):
        e(f"v_add_u32 v8, {t}, v7\nv_cvt_f32_u32 v12, v8\nv_mul_f32 v16, v12, v9")
        cosev(e,20+t,16,10,14,40,41)
    e(f"""s_lshl_b32 s37, s35, 10
    s_add_u32 s37, s37, {CTW}
    v_lshlrev_b32 v18, 4, v2
    s_nop 0
    buffer_store_dwordx4 v[20:23], v18, s[8:11], s37 offen""")
    e.lab("K0_GN")
    e("s_add_u32 s34, s34, 448\ns_nop 1\ns_branch K0_GL")
    RED=73728
    PR=81920
    e.lab("K0_LN")
    stamp(e,1)
    e("s_waitcnt vmcnt(0)")
    stamp(e,2)
    for j in range(36):
        e(f"v_lshlrev_b32 v{100+2*j}, 16, v{64+j}\nv_and_b32 v{101+2*j}, 0xffff0000, v{64+j}")
    for j in range(36):
        r=20+2*(j%4)
        e(f"v_mov_b32 v{r}, v{100+2*j}\nv_mov_b32 v{r+1}, v{101+2*j}" if j<4 else f"v_pk_add_f32 v[{r}:{r+1}], v[{100+2*j}:{101+2*j}], v[{r}:{r+1}]")
    e("v_pk_add_f32 v[20:21], v[20:21], v[22:23]\nv_pk_add_f32 v[24:25], v[24:25], v[26:27]\nv_pk_add_f32 v[20:21], v[20:21], v[24:25]\ns_nop 0\nv_add_f32 v6, v20, v21")
    e(f"""s_lshl_b32 s36, s26, 10
    s_lshl_b32 s37, s27, 3
    s_add_u32 s37, s37, s36
    s_add_u32 s37, s37, {RED}
    v_lshlrev_b32 v7, 5, v3
    v_lshl_add_u32 v8, v4, 2, v7
    v_add_u32 v8, s37, v8
    s_add_u32 s36, s36, {RED}
    v_add_u32 v7, s36, v7
    ds_write_b32 v8, v6
    s_waitcnt lgkmcnt(0)
    s_barrier
    ds_read_b128 v[20:23], v7
    ds_read_b128 v[24:27], v7 offset:16
    s_waitcnt lgkmcnt(0)
    v_pk_add_f32 v[20:21], v[20:21], v[22:23]
    v_pk_add_f32 v[24:25], v[24:25], v[26:27]
    v_pk_add_f32 v[20:21], v[20:21], v[24:25]
    s_nop 0
    v_add_f32 v20, v20, v21
    v_mul_f32 v28, {fbits(-1/576)}, v20
    v_mul_f32 v29, {fbits(-1/576)}, v20""")
    for j in range(36): e(f"v_pk_add_f32 v[{100+2*j}:{101+2*j}], v[{100+2*j}:{101+2*j}], v[28:29]")
    for j in range(36):
        r=20+2*(j%4)
        if j<4: e(f"v_pk_mul_f32 v[{r}:{r+1}], v[{100+2*j}:{101+2*j}], v[{100+2*j}:{101+2*j}]")
        else: e(f"v_pk_fma_f32 v[{r}:{r+1}], v[{100+2*j}:{101+2*j}], v[{100+2*j}:{101+2*j}], v[{r}:{r+1}]")
    e("""v_pk_add_f32 v[20:21], v[20:21], v[22:23]
    v_pk_add_f32 v[24:25], v[24:25], v[26:27]
    v_pk_add_f32 v[20:21], v[20:21], v[24:25]
    s_nop 0
    v_add_f32 v6, v20, v21
    ds_write_b32 v8, v6 offset:2048
    s_waitcnt lgkmcnt(0)
    s_barrier
    ds_read_b128 v[20:23], v7 offset:2048
    ds_read_b128 v[24:27], v7 offset:2064
    s_waitcnt lgkmcnt(0)
    v_pk_add_f32 v[20:21], v[20:21], v[22:23]
    v_pk_add_f32 v[24:25], v[24:25], v[26:27]
    v_pk_add_f32 v[20:21], v[20:21], v[24:25]
    s_nop 0
    v_add_f32 v20, v20, v21""")
    e(f"""v_mov_b32 v21, {fbits(1e-5)}
    v_fmac_f32 v21, {fbits(1/576)}, v20
    v_rsq_f32 v28, v21
    s_nop 0
    v_mov_b32 v29, v28
    s_mul_i32 s36, s26, 36
    s_mul_i32 s37, s27, 9
    s_add_u32 s36, s36, s37
    s_lshl_b32 s36, s36, 10
    v_lshlrev_b32 v18, 4, v2
    v_add_u32 v17, s36, v18""")
    for j in range(36): e(f"v_pk_mul_f32 v[{100+2*j}:{101+2*j}], v[{100+2*j}:{101+2*j}], v[28:29]")
    for c in range(9):
        for j in range(4*c,4*c+4): e(f"v_cvt_pk_bf16_f32 v{64+j}, v{100+2*j}, v{101+2*j}")
        e(f"ds_write_b128 v17, v[{64+4*c}:{67+4*c}] offset:{1024*c}")
    e(f"""s_cmp_lg_u32 s25, 0
    s_cbranch_scc1 K0_MM
    s_mul_i32 s36, s28, 36
    s_mul_i32 s37, s27, 9
    s_add_u32 s36, s36, s37
    s_lshl_b32 s36, s36, 10
    s_add_u32 s36, s36, {XN}
    v_add_u32 v19, 4096, v18""")
    for c in range(9):
        e(f"buffer_store_dwordx4 v[{64+4*c}:{67+4*c}], v{18 if c<4 else 19}, s[8:11], s36 offen offset:{1024*(c%4)}" if c<8 else f"v_add_u32 v19, 4096, v19\nbuffer_store_dwordx4 v[{64+4*c}:{67+4*c}], v19, s[8:11], s36 offen")
    e.lab("K0_MM")
    e("s_waitcnt lgkmcnt(0)\ns_barrier")
    stamp(e,3)
    e("s_cmp_ge_u32 s3, 6\ns_cbranch_scc1 K0_FIN")
    e("""s_mul_i32 s36, s26, 18432
    v_lshlrev_b32 v18, 4, v2
    v_add_u32 v18, s36, v18
    v_add_u32 v19, 36864, v18""")
    seq=[(c,t) for c in range(18) for t in range(2)]
    NR=9
    def rd(n):
        c,t=seq[n]; r=132+4*(n%NR)
        e(f"ds_read_b128 v[{r}:{r+3}], v{18+t} offset:{1024*c}")
    for n in range(NR): rd(n)
    for n,(c,t) in enumerate(seq):
        rem=min(36,n+NR)-n-1
        e(f"s_waitcnt lgkmcnt({rem})")
        r=132+4*(n%NR); d=100+16*t
        e(f"v_mfma_f32_32x32x16_bf16 v[{d}:{d+15}], v[{172+4*c}:{175+4*c}], v[{r}:{r+3}], {'0' if c==0 else f'v[{d}:{d+15}]'}")
        if n+NR<36: rd(n+NR)
    stamp(e,4)
    e(f"""s_lshl_b32 s36, s27, 1
    s_add_u32 s36, s36, s26
    s_lshl_b32 s36, s36, 12
    s_add_u32 s36, s36, {PR}
    v_lshlrev_b32 v18, 4, v2
    v_add_u32 v19, s36, v18
    v_xor_b32 v17, 4096, v19
    s_cmp_eq_u32 s26, 0
    s_nop 7
    s_nop 3
    s_cbranch_scc1 K0_S0""")
    for i in range(4): e(f"ds_write_b128 v19, v[{100+4*i}:{103+4*i}] offset:{i*1024}")
    for r in range(16): e(f"v_mov_b32 v{100+r}, v{116+r}")
    e("s_branch K0_S1")
    e.lab("K0_S0")
    for i in range(4): e(f"ds_write_b128 v19, v[{116+4*i}:{119+4*i}] offset:{i*1024}")
    e.lab("K0_S1")
    e.lab("K0_FIN")
    e("s_waitcnt lgkmcnt(0)\ns_barrier\ns_cmp_ge_u32 s3, 6\ns_cbranch_scc1 K0_GEN")
    for i in range(4): e(f"ds_read_b128 v[{116+4*i}:{119+4*i}], v17 offset:{i*1024}")
    e("s_waitcnt lgkmcnt(0)")
    for r in range(16): e(f"v_add_f32 v{100+r}, v{100+r}, v{116+r}")
    for i in range(4): e(f"v_cvt_pk_bf16_f32 v{20+2*i}, v{100+4*i}, v{101+4*i}\nv_cvt_pk_bf16_f32 v{21+2*i}, v{102+4*i}, v{103+4*i}")
    e(f"""s_mul_i32 s36, s25, 3
    s_add_u32 s36, s36, s27
    s_lshl_b32 s36, s36, 17
    s_lshl_b32 s37, s29, 2
    s_add_u32 s36, s36, s37
    s_add_u32 s36, s36, {Y1T}
    v_lshlrev_b32 v18, 14, v4
    v_lshl_add_u32 v18, v3, 2, v18
    v_add_u32 v19, 8192, v18""")
    for i in range(4):
        e(f"buffer_store_dword v{20+2*i}, v18, s[8:11], s36 offen\nbuffer_store_dword v{21+2*i}, v19, s[8:11], s36 offen\ns_add_u32 s36, s36, {4*8192}")
    e.lab("K0_DONE")
    stamp(e,5)
    e("s_waitcnt vmcnt(0)")
    stamp(e,6)
    stamp_out(e,7,0,"K0A")
    e("s_endpgm")
    e.lab("K0_WT")
    BL=64*578
    e(f"""s_sub_u32 s24, s2, 224
    s_mov_b32 s12, s20
    s_mov_b32 s13, s21
    s_mov_b32 s14, {2048*578}
    s_mov_b32 s16, s22
    s_mov_b32 s17, s23
    s_mov_b32 s18, {2048*578}
    s_mov_b32 s19, 0x00020000
    s_mul_i32 s25, s24, {BL}
    v_lshlrev_b32 v5, 4, v0
    s_lshl_b32 s26, s3, 10""")
    for m in range(2):
        for it in range(5):
            e(f"""s_add_u32 m0, s26, {m*40960+it*8192}
            s_add_u32 s27, s25, {it*8192}
            buffer_load_dwordx4 v5, s[{12+4*m}:{15+4*m}], s27 offen lds""")
    e(f"""s_lshl_b32 s28, s3, 1
    v_add_u32 v6, s28, v4
    v_mul_u32_u24 v7, 578, v3
    v_lshl_add_u32 v7, v6, 1, v7
    s_lshr_b32 s29, s24, 2
    s_lshl_b32 s29, s29, 1
    s_and_b32 s33, s24, 1
    s_add_u32 s29, s29, s33
    s_lshl_b32 s29, s29, 9
    s_bfe_u32 s33, s24, 0x10001
    s_lshl_b32 s33, s33, 8
    s_add_u32 s29, s29, s33
    s_add_u32 s29, s29, {WT}
    v_lshlrev_b32 v8, 13, v6
    v_lshl_add_u32 v8, v3, 3, v8
    s_waitcnt vmcnt(0)
    s_barrier
    s_movk_i32 s44, 296
    s_mov_b32 s34, 0""")
    stamp(e,1)
    e.lab("K0_WL")
    e(f"""ds_read_u16 v10, v7
    ds_read_u16 v12, v7 offset:40960
    ds_read_u16 v11, v7 offset:{32*578}
    ds_read_u16 v13, v7 offset:{40960+32*578}
    v_cmp_gt_u32 vcc, 289, v6
    v_cmp_gt_u32 s[40:41], s44, v6
    s_waitcnt lgkmcnt(0)
    v_lshl_or_b32 v10, v12, 16, v10
    v_lshl_or_b32 v11, v13, 16, v11
    v_cndmask_b32 v10, 0, v10, vcc
    v_cndmask_b32 v11, 0, v11, vcc
    s_and_saveexec_b64 s[42:43], s[40:41]
    buffer_store_dwordx2 v[10:11], v8, s[8:11], s29 offen
    s_mov_b64 exec, s[42:43]
    v_add_u32 v6, 16, v6
    v_add_u32 v7, 32, v7
    v_add_u32 v8, {16*8192}, v8
    s_add_u32 s34, s34, 1
    s_cmp_lt_u32 s34, 19
    s_cbranch_scc1 K0_WL
    s_waitcnt vmcnt(0)""")
    stamp(e,2)
    stamp_out(e,3,230,"K0W")
    e.lab("K0_END")
    e("s_endpgm")
    return e.text()
```

```python
from gen_common import *
from gen_gemm import mainloop
from gen_fft import fft
VA=4; VB=6
def k2():
    e=E(); head(e,"k2_kernel")
    STG=26624; NST=3; WOFF=8192
    e(f"""s_cmp_ge_u32 s2, 330
    s_cbranch_scc1 K2_END
    s_load_dwordx2 s[6:7], s[0:1], 72
    s_load_dwordx2 s[20:21], s[0:1], 48
    v_lshrrev_b32 v1, 6, v0
    v_and_b32 v2, 63, v0
    s_nop 0
    v_readfirstlane_b32 s3, v1
    s_waitcnt lgkmcnt(0)""")
    srd(e,8,6,WS_SIZE); srd(e,12,20,576*4608*2)
    stamp(e,0)
    e("s_cmp_ge_u32 s2, 256\ns_cbranch_scc1 K2_FFT" if os.environ.get('FFTLAST','') else "s_cmp_lt_u32 s2, 74\ns_cbranch_scc1 K2_FFT\ns_sub_u32 s2, s2, 74")
    e(f"""s_and_b32 s24, s2, 7
    s_lshr_b32 s25, s2, 4
    s_bfe_u32 s28, s2, 0x10003
    v_bfe_u32 v8, v2, 4, 1
    v_lshrrev_b32 v9, 5, v2
    v_bfe_u32 v5, v2, 2, 2
    v_and_b32 v10, 1, v2
    v_bfe_u32 v11, v2, 1, 1
    v_lshlrev_b32 v10, 4, v10
    v_lshl_or_b32 v10, v11, 3, v10
    v_lshl_add_u32 v5, v9, 3, v5
    v_mul_u32_u24 v5, 576, v5
    v_add_u32 v5, v5, v10
    v_lshl_add_u32 v5, v8, 5, v5
    v_add_u32 v5, {WOFF}, v5
    s_and_b32 s26, s3, 3
    s_lshr_b32 s27, s3, 2
    s_mul_i32 s29, s27, 320
    v_add_u32 v5, s29, v5
    v_mov_b32 v4, v5
    v_lshlrev_b32 v7, 4, v2
    s_lshl_b32 s29, s26, 11
    v_add_u32 v7, s29, v7
    v_mov_b32 v6, v7
    s_mov_b32 s30, 0
    s_mov_b32 s32, 0
    s_mul_i32 s38, s24, {576*1152}
    s_mul_i32 s39, s28, 576
    s_add_u32 s38, s38, s39""")
    def wpieces(e, regs, start):
        for p,r in enumerate(regs):
            e(f"""v_add_u32 v20, {64*p}, v2
            v_add_u32 v20, s39, v20
            v_mul_u32_u24 v21, 1821, v20
            v_lshrrev_b32 v21, 16, v21
            v_mul_u32_u24 v22, 36, v21
            v_sub_u32 v22, v20, v22
            v_mul_u32_u24 v21, 1152, v21
            v_lshl_add_u32 v{r}, v22, 4, v21""")
    e("s_cmp_eq_u32 s27, 1\ns_cbranch_scc1 K2_B")
    for ty,(nA,a0) in enumerate([(5,0),(4,5)]):
        tag="K2A" if ty==0 else "K2B"
        if ty==1: e.lab("K2_B")
        adv=[f"s_add_u32 s38, s38, {32*1152}", f"s_add_u32 s32, s32, {STG}", f"s_cmp_eq_u32 s32, {STG*NST}", "s_cselect_b32 s32, 0, s32"]
        if ty==0:
            e(f"""s_lshl_b32 s33, s25, 2
            s_add_u32 s33, s33, s26
            s_mul_i32 s33, s33, 288
            s_mul_i32 s34, s24, 36
            s_add_u32 s33, s33, s34
            s_lshl_b32 s33, s33, 10
            s_add_u32 s33, s33, {HF}
            v_lshlrev_b32 v1, 4, v2
            s_lshl_b32 s35, s26, 11
            s_lshl_b32 s39, s26, 6
            s_lshl_b32 s34, s26, 10
            s_add_u32 s34, s34, {WOFF}""")
            wpieces(e,[3],0)
            dmas=["s_add_u32 m0, s32, s35","s_add_u32 s37, s33, 1024\nbuffer_load_dwordx4 v1, s[8:11], s33 offen lds",
                  "s_add_u32 m0, m0, 1024","s_add_u32 s33, s33, 2048\nbuffer_load_dwordx4 v1, s[8:11], s37 offen lds",
                  "s_add_u32 m0, s32, s34","s_nop 0\nbuffer_load_dwordx4 v3, s[12:15], s38 offen lds"]+adv
            nvm=3
        else:
            e(f"""s_mul_i32 s39, s26, 224
            s_add_u32 s39, s39, 256
            s_lshl_b32 s34, s39, 4
            s_add_u32 s34, s34, {WOFF}""")
            RG=[1,3,112,113]; wpieces(e,RG,0)
            dmas=["s_add_u32 s36, s32, s34"]
            for p in range(4):
                dmas.append(f"s_add_u32 m0, s36, {p*1024}")
                if p<3: dmas.append(f"s_nop 0\nbuffer_load_dwordx4 v{RG[p]}, s[12:15], s38 offen lds")
                else: dmas.append(f"s_mov_b32 exec_hi, 0\nbuffer_load_dwordx4 v{RG[p]}, s[12:15], s38 offen lds\ns_mov_b32 exec_hi, -1")
            dmas+=adv
            nvm=4
        for _ in range(NST):
            for x in dmas: e(x)
        stamp(e,1)
        FR=8; nB=1; inpl=2 if ty==0 else 0
        ACC=48
        for r in range(16*nA): e(f"v_mov_b32 v{ACC+r}, 0")
        mainloop(e,tag,nA,nB,NST,STG,18,lambda a,q,j:(16*q+4*j)*576+64*a,lambda b,q:q*1024,dmas,nvm,ACC,FR,VA,VB,30,31,inplace=inpl,tail=[(10,WS_SIZE),(14,576*4608*2)])
        stamp(e,2)
        e(f"""s_waitcnt lgkmcnt(0)
        s_lshl_b32 s33, s24, 6
        s_lshl_b32 s34, s25, 2
        s_add_u32 s33, s33, s34
        s_add_u32 s33, s33, s26
        s_mul_i32 s33, s33, 18
        s_mul_i32 s34, s28, 9
        s_add_u32 s33, s33, s34
        s_add_u32 s33, s33, {a0}
        s_lshl_b32 s33, s33, 11
        s_add_u32 s33, s33, {PF}
        v_and_b32 v1, 63, v0
        v_lshlrev_b32 v1, 4, v1
        s_nop 7""")
        for a in range(nA):
            d=ACC+16*a; o=8+8*(a%2)
            for t in range(8): e(f"v_cvt_pk_bf16_f32 v{o+t}, v{d+2*t}, v{d+2*t+1}")
            e(f"buffer_store_dwordx4 v[{o}:{o+3}], v1, s[8:11], s33 offen\nbuffer_store_dwordx4 v[{o+4}:{o+7}], v1, s[8:11], s33 offen offset:1024\ns_add_u32 s33, s33, 2048")
        stamp(e,3)
        e("s_waitcnt vmcnt(0)")
        stamp(e,4)
        stamp_out(e,5,int(os.environ.get("SWG","100")),tag)
        e("s_endpgm")
    fft(e)
    e.lab("K2_END"); e("s_endpgm")
    return e.text()
```

```python
from gen_common import *
def k3():
    e=E(); head(e,"k3_kernel")
    e(f"""s_cmp_ge_u32 s2, 576
    s_cbranch_scc1 K3_END
    s_load_dwordx2 s[6:7], s[0:1], 72
    s_load_dwordx2 s[4:5], s[0:1], 0
    s_load_dwordx2 s[20:21], s[0:1], 56
    s_and_b32 s24, s2, 7
    s_lshl_b32 s24, s24, 3
    s_bfe_u32 s25, s2, 0x30003
    s_add_u32 s24, s24, s25
    s_lshr_b32 s25, s2, 6
    v_lshrrev_b32 v3, 6, v0
    v_and_b32 v1, 63, v0
    v_lshlrev_b32 v1, 4, v1
    v_readfirstlane_b32 s3, v3
    s_waitcnt lgkmcnt(0)""")
    stamp(e,0)
    srd(e,8,6,WS_SIZE); srd(e,12,4,2048*1152); srd(e,16,20,2048*1152)
    e(f"""s_mul_i32 s26, s24, {37*1024}
    s_add_u32 s26, s26, {ZF}
    s_mul_i32 s27, s25, {2*37*1024}
    s_add_u32 s27, s27, {GF}
    s_add_u32 s28, s27, {37*1024}
    s_mul_i32 s29, s24, 18
    s_lshl_b32 s30, s25, 1
    s_add_u32 s29, s29, s30
    s_lshl_b32 s29, s29, 11
    s_add_u32 s29, s29, {PF}
    v_and_b32 v2, 31, v0
    v_bfe_u32 v3, v0, 5, 1
    s_lshl_b32 s30, s24, 5
    v_add_u32 v2, s30, v2
    v_mul_u32_u24 v2, 1152, v2
    v_lshl_add_u32 v2, v3, 4, v2
    s_lshl_b32 s30, s25, 7""")
    D=5; FB=64; PB=32; A0,A1=0+96+0,0
    ACCS=[4,20]
    PB=36; FB=68
    e(f"""s_lshl_b32 s31, s3, 10
    s_add_u32 s26, s26, s31
    s_add_u32 s27, s27, s31
    s_add_u32 s28, s28, s31
    s_mul_i32 s31, s3, {2*64*18*2048}
    s_add_u32 s29, s29, s31
    s_lshr_b32 s31, s3, 1
    s_lshl_b32 s31, s31, 6
    s_add_u32 s30, s30, s31
    s_and_b32 s31, s3, 1
    s_lshl_b32 s31, s31, 5
    s_add_u32 s30, s30, s31
    s_cmp_lg_u32 s3, 0
    s_cbranch_scc1 K3_W9""")
    for n in (10,9):
        if n==9: e.lab("K3_W9")
        Q=[]
        def ld(c):
            b=FB+12*(c%D)
            e(f"""buffer_load_dwordx4 v[{b}:{b+3}], v1, s[8:11], s26 offen
            buffer_load_dwordx4 v[{b+4}:{b+7}], v1, s[8:11], s27 offen
            buffer_load_dwordx4 v[{b+8}:{b+11}], v1, s[8:11], s28 offen
            s_add_u32 s26, s26, 4096
            s_add_u32 s27, s27, 4096
            s_add_u32 s28, s28, 4096""")
            Q.extend([('c',c)]*3)
        def wait(tag):
            last=max(i for i,t in enumerate(Q) if t==tag)
            e(f"s_waitcnt vmcnt({len(Q)-1-last})")
        for c in range(D): ld(c)
        for p in range(8):
            e(f"buffer_load_dwordx4 v[{PB+4*p}:{PB+4*p+3}], v1, s[8:11], s29 offen offset:{(p&3)*1024}")
            if p==3: e(f"s_add_u32 s29, s29, {64*18*2048}")
            Q.append(('p',p))
        XR=None
        for c in range(n):
            wait(('c',c))
            b=FB+12*(c%D)
            for a,d in enumerate(ACCS):
                e(f"v_mfma_f32_32x32x16_bf16 v[{d}:{d+15}], v[{b+4+4*a}:{b+7+4*a}], v[{b}:{b+3}], {'0' if c==0 else f'v[{d}:{d+15}]'}")
            if c+D<n: ld(c+D)
            elif XR is None and c+D>=n and c>=D:
                XR=FB+12*((c-1)%D) if (c-1)+D>=n else None
                if XR is not None:
                    e(f"buffer_load_dwordx4 v[{XR}:{XR+3}], v2, s[12:15], s30 offen"); Q.append(('x',0))
        assert XR is not None
        stamp(e,1)
        e("s_nop 7\ns_nop 3")
        for p in range(8):
            wait(('p',p))
            d=ACCS[(p&3)>>1]+8*(p&1); r=PB+4*p
            for t in range(4):
                o=d+2*t
                e(f"v_lshlrev_b32 v2, 16, v{r+t}\nv_and_b32 v3, 0xffff0000, v{r+t}\nv_add_f32 v{o}, v{o}, v2\nv_add_f32 v{o+1}, v{o+1}, v3")
        e(f"s_waitcnt vmcnt(0)")
        for t in range(4): e(f"v_mov_b32 v{36+t}, v{XR+t}")
        if n==10: e("s_branch K3_RED")
    e.lab("K3_RED")
    stamp(e,2)
    e(f"""s_lshl_b32 s31, s3, 13
    v_add_u32 v2, s31, v1""")
    for q in range(4):
        for h2 in range(2):
            r=4+8*q+4*h2
            e(f"ds_write_b128 v2, v[{r}:{r+3}] offset:{q*2048+h2*1024}")
    e(f"""s_lshl_b32 s31, s3, 11
    v_add_u32 v2, s31, v1
    s_waitcnt lgkmcnt(0)
    s_barrier""")
    for w in range(4):
        for h2 in range(2):
            r=40+8*w+4*h2
            e(f"ds_read_b128 v[{r}:{r+3}], v2 offset:{w*8192+h2*1024}")
    e(f"""v_and_b32 v2, 31, v0
    v_bfe_u32 v3, v0, 5, 1
    s_lshl_b32 s31, s24, 5
    v_add_u32 v2, s31, v2
    v_mul_u32_u24 v2, 1152, v2
    v_lshl_add_u32 v2, v3, 4, v2""")
    for t in range(4):
        e(f"v_lshlrev_b32 v{4+2*t}, 16, v{36+t}\nv_and_b32 v{5+2*t}, 0xffff0000, v{36+t}")
    for w in range(4):
        e(f"s_waitcnt lgkmcnt({2*(3-w)})")
        for t in range(8): e(f"v_add_f32 v{4+t}, v{4+t}, v{40+8*w+t}")
    for t in range(4): e(f"v_cvt_pk_bf16_f32 v{12+t}, v{4+2*t}, v{5+2*t}")
    e(f"buffer_store_dwordx4 v[12:15], v2, s[16:19], s30 offen")
    e("s_waitcnt vmcnt(0)")
    stamp(e,3)
    stamp_out(e,4,int(os.environ.get("SWG","0")),"K3")
    e.lab("K3_END"); e("s_endpgm")
    return e.text()
```

```python
import os
import sys
from gen_common import *
from gen_k0 import k0
from gen_gemm import k1
from gen_k2 import k2
from gen_k3 import k3
ref=open('parallel_sum__spectral_gfnet__glu_gated_geglu__prompt.s.ref').read()
hdr=''.join(l+'\n' for l in ref.split('\n')[:11])
launch="""; @launch kernel=k0_kernel grid=(256,1,1) block=(512,1,1) lds=106496
; @launch kernel=k1_kernel grid=(256,1,1) block=(512,1,1) lds=140288
; @launch kernel=k2_kernel grid=(330,1,1) block=(512,1,1) lds=79872
; @launch kernel=k3_kernel grid=(576,1,1) block=(256,1,1) lds=32768
"""
out=hdr+launch+'.amdgcn_target "amdgcn-amd-amdhsa--gfx950"\n.text\n'+k0()+k1()+k2()+k3()
out+='.section .rodata,"a"\n.p2align 6\n'+desc("k0_kernel",252 if 'pf' in os.environ.get('OPT','').split(',') else 244)+".p2align 6\n"+desc("k1_kernel",256)+".p2align 6\n"+desc("k2_kernel",128)+".p2align 6\n"+desc("k3_kernel",128)
dst=sys.argv[1] if len(sys.argv)>1 else 'parallel_sum__spectral_gfnet__glu_gated_geglu__prompt.s'
open(dst,'w').write(out)
print("written",len(out))
import re, os
ST=os.environ.get('ST','k0:sc1,k1:sc1,k2:sc1')
if ST:
    pol=dict(x.split(':') for x in ST.split(','))
    res=[];cur=None
    for l in out.split('\n'):
        m=re.match(r'(k\d)_kernel:',l)
        if m: cur=m.group(1)
        if 'buffer_store' in l and cur in pol and 's[4:7]' not in l: l=l+' '+pol[cur]
        res.append(l)
    out='\n'.join(res)
    open(dst,'w').write(out)
```

```python
from gen_common import *
import os
OPT=os.environ.get('OPT','').split(',')
def mainloop(e, tag, nA, nB, NST, STG, NCH, aoff, boff, dmas, nvm, ACC, FR, vA, vB, sStage, sIt, inplace=0, tail=()):
    def rb(set_,b): return FR+set_*4*nB+4*b
    def ra(set_,a):
        base=FR+8*nB
        if a<inplace: return base+4*a
        return base+4*inplace+(set_*(nA-inplace)+(a-inplace))*4
    def rdA(set_,q,a):
        r=ra(set_,a)
        return [f"ds_read_b64_tr_b16 v[{r}:{r+1}], v{vA} offset:{aoff(a,q,0)}", f"ds_read_b64_tr_b16 v[{r+2}:{r+3}], v{vA} offset:{aoff(a,q,1)}"]
    def reads(set_, q, all_=False):
        L=[]
        for b in range(nB): L.append(f"ds_read_b128 v[{rb(set_,b)}:{rb(set_,b)+3}], v{vB} offset:{boff(b,q)}")
        for a in list(range(inplace,nA))+list(range(inplace)): L+=rdA(set_,q,a)
        return L
    def mfmas(set_):
        L=[]
        for a in range(nA):
            for b in range(nB):
                d=ACC+16*(a*nB+b); x=ra(set_,a); y=rb(set_,b)
                L.append(f"v_mfma_f32_32x32x16_bf16 v[{d}:{d+15}], v[{x}:{x+3}], v[{y}:{y+3}], v[{d}:{d+15}]")
        return L
    if 'nodma' in OPT: dmas=[x for x in dmas if 'buffer_load' not in x]
    def inter(M, O):
        if 'nomfma' in OPT: M=['s_nop 0']*len(M)
        if 'nolds' in OPT: O=[x for x in O if not x.startswith('ds_read')]
        n=len(M); k=0; lim=len(O)-2*inplace
        for i,m in enumerate(M):
            e(m)
            tgt=(len(O)*(i+1)+n-1)//n
            if i+1<inplace*nB: tgt=min(tgt,lim)
            while k<tgt: e(O[k]); k+=1
    e(f"s_waitcnt vmcnt({nvm*(NST-1)})\ns_barrier")
    for x in reads(0,0): e(x)
    e(f"s_mov_b32 s{sIt}, 0")
    e.lab(f"{tag}_LOOP")
    e("s_waitcnt lgkmcnt(0)")
    inter(mfmas(0), reads(1,1))
    e(f"""s_add_u32 s{sStage}, s{sStage}, {STG}
    s_cmp_eq_u32 s{sStage}, {STG*NST}
    s_cselect_b32 s{sStage}, 0, s{sStage}
    s_waitcnt vmcnt({nvm*(NST-2)}) lgkmcnt(0)
    s_barrier""")
    upd=[f"v_add_u32 v{vA}, s{sStage}, v{vA+1}", f"v_add_u32 v{vB}, s{sStage}, v{vB+1}"]
    for x in upd: e(x)
    pre=[]
    if tail and 'notail' not in OPT:
        pre=[f"s_cmp_lt_u32 s{sIt}, {NCH-NST}\n"+"\n".join(f"s_cselect_b32 s{r}, {sz}, 0" for r,sz in tail)]
    inter(mfmas(1), reads(0,0)[:2]+pre+dmas+reads(0,0)[2:])
    e(f"""s_add_u32 s{sIt}, s{sIt}, 1
    s_cmp_lt_u32 s{sIt}, {NCH}
    s_cbranch_scc1 {tag}_LOOP""")
    for r,sz in tail: e(f"s_mov_b32 s{r}, {sz}")

def gelu_mul(e, g, u, t0, t1):
    import math
    c = -2*math.sqrt(2/math.pi)*math.log2(math.e)
    return [f"v_mul_f32 v{t0}, v{g}, v{g}",
            f"v_fma_f32 v{t0}, v{t0}, s46, v52",
            f"v_mul_f32 v{t0}, v{t0}, v{g}",
            f"v_exp_f32 v{t0}, v{t0}",
            f"v_mul_f32 v{t1}, v{g}, v{u}",
            f"v_add_f32 v{t0}, 1.0, v{t0}",
            f"v_rcp_f32 v{t0}, v{t0}",
            None,
            f"v_mul_f32 v{g}, v{t1}, v{t0}"]

def k1():
    import math
    e=E(); head(e,"k1_kernel")
    stamp(e,0)
    STG=35072; NST=4; GOFF=16384; UOFF=GOFF+9216+128
    c=-2*math.sqrt(2/math.pi)*math.log2(math.e)
    e(f"""s_cmp_ge_u32 s2, 256
    s_cbranch_scc1 K1_END
    s_load_dwordx2 s[6:7], s[0:1], 72
    s_load_dwordx4 s[20:23], s[0:1], 32
    v_lshrrev_b32 v1, 6, v0
    v_and_b32 v2, 63, v0
    s_nop 0
    v_readfirstlane_b32 s3, v1
    s_and_b32 s24, s2, 7
    s_lshl_b32 s24, s24, 2
    s_bfe_u32 s25, s2, 0x20003
    s_add_u32 s24, s24, s25
    s_lshr_b32 s25, s2, 5
    s_mov_b32 s46, {fbits(c*0.044715)}
    s_mov_b32 s47, {fbits(c)}
    s_waitcnt lgkmcnt(0)""")
    srd(e,8,6,WS_SIZE); srd(e,12,20,576*4608*2); srd(e,16,22,576*4608*2)
    e(f"""v_bfe_u32 v3, v2, 4, 1
    v_lshrrev_b32 v4, 5, v2
    v_bfe_u32 v5, v2, 2, 2
    v_and_b32 v6, 1, v2
    v_bfe_u32 v7, v2, 1, 1
    v_lshlrev_b32 v6, 4, v6
    v_lshl_or_b32 v6, v7, 3, v6
    v_lshl_add_u32 v5, v4, 3, v5
    v_mul_u32_u24 v5, 288, v5
    v_add_u32 v5, v5, v6
    v_mul_u32_u24 v3, {UOFF-GOFF}, v3
    v_add_u32 v5, v5, v3
    v_add_u32 v11, {GOFF}, v5
    s_and_b32 s26, s3, 3
    s_lshr_b32 s27, s3, 2
    s_mul_i32 s28, s27, 160
    v_add_u32 v11, s28, v11
    v_mov_b32 v10, v11
    v_lshlrev_b32 v13, 4, v2
    s_lshl_b32 s28, s26, 12
    v_add_u32 v13, s28, v13
    v_mov_b32 v12, v13
    s_mov_b32 s30, 0
    s_mov_b32 s32, 0""")
    e("s_cmp_eq_u32 s27, 1\ns_cbranch_scc1 K1_B")
    for ty,(nA,a0) in enumerate([(5,0),(4,5)]):
        tag="K1A" if ty==0 else "K1B"
        if ty==1: e.lab("K1_B")
        if ty==0:
            e(f"""s_lshl_b32 s33, s25, 3
            s_lshl_b32 s34, s26, 1
            s_add_u32 s33, s33, s34
            s_mul_i32 s33, s33, {36*1024}
            s_add_u32 s33, s33, {XN}
            v_lshlrev_b32 v14, 4, v2
            v_add_u32 v15, {36*1024}, v14
            s_lshl_b32 s35, s26, 12""")
            dm=[]
            for p in range(4):
                dm.append(f"s_add_u32 m0, s36, {p*1024}")
                dm.append(f"buffer_load_dwordx4 v{14+(p>>1)}, s[8:11], s33 offen lds" if p%2==0 else f"s_add_u32 s37, s33, 1024\nbuffer_load_dwordx4 v{14+(p>>1)}, s[8:11], s37 offen lds")
            pre=["s_add_u32 s36, s32, s35"]
            post=["s_add_u32 s33, s33, 2048", f"s_add_u32 s32, s32, {STG}", f"s_cmp_eq_u32 s32, {STG*NST}", "s_cselect_b32 s32, 0, s32"]
            nvm=4
        else:
            e(f"""s_lshr_b32 s34, s26, 1
            s_and_b32 s35, s26, 1
            s_cmp_eq_u32 s34, 1
            s_cselect_b32 s40, s16, s12
            s_cselect_b32 s41, s17, s13
            s_mov_b32 s42, s14
            s_mov_b32 s43, s15
            s_mul_i32 s33, s24, 288
            s_mul_i32 s38, s35, 288""")
            for p in range(5):
                e(f"""v_add_u32 v20, {64*p}, v2
                v_add_u32 v20, s38, v20
                v_mul_u32_u24 v21, 3641, v20
                v_lshrrev_b32 v21, 16, v21
                v_mul_u32_u24 v22, 18, v21
                v_sub_u32 v22, v20, v22
                v_mul_u32_u24 v21, 9216, v21
                v_lshl_add_u32 v{14+p}, v22, 4, v21""")
            e(f"""s_mul_i32 s35, s35, 4608
            s_mul_i32 s34, s34, {UOFF-GOFF}
            s_add_u32 s35, s35, s34
            s_add_u32 s35, s35, {GOFF}""")
            dm=[]
            for p in range(5):
                dm.append(f"s_add_u32 m0, s36, {p*1024}")
                if p<4: dm.append(f"s_nop 0\nbuffer_load_dwordx4 v{14+p}, s[40:43], s33 offen lds")
                else: dm.append(f"s_mov_b32 exec_hi, 0\nbuffer_load_dwordx4 v{14+p}, s[40:43], s33 offen lds\ns_mov_b32 exec_hi, -1")
            pre=["s_add_u32 s36, s32, s35"]
            post=[f"s_add_u32 s33, s33, {32*9216}", f"s_add_u32 s32, s32, {STG}", f"s_cmp_eq_u32 s32, {STG*NST}", "s_cselect_b32 s32, 0, s32"]
            nvm=5
        dmas=pre+dm+post
        if ty==0: dmas=[x if not x.startswith("buffer_load") else "s_nop 0\n"+x for x in dmas]
        for _ in range(NST):
            for x in dmas: e(x)
        ACC=96; FR=24
        stamp(e,1)
        nB=2
        for r in range(16*nA*nB): e(f"v_mov_b32 v{ACC+r}, 0")
        mainloop(e,tag,nA,nB,NST,STG,18,lambda a,q,j:(16*q+4*j)*288+32*a,lambda b,q:b*2048+q*1024,dmas,nvm,ACC,FR,10,12,30,31,tail=[(10,WS_SIZE),(14,576*4608*2),(18,576*4608*2)])
        stamp(e,2)
        e(f"""s_waitcnt lgkmcnt(0)
        s_lshl_b32 s33, s25, 3
        s_lshl_b32 s34, s26, 1
        s_add_u32 s33, s33, s34
        s_mul_i32 s33, s33, 288
        s_mul_i32 s34, s24, 9
        s_add_u32 s33, s33, s34
        s_add_u32 s33, s33, {a0}
        s_lshl_b32 s33, s33, 10
        s_add_u32 s33, s33, {HF}
        v_lshlrev_b32 v14, 4, v2
        v_mov_b32 v52, s47
        s_nop 7""")
        for a in range(nA if 'noepi' not in OPT else 0):
            for b in range(nB):
                d=ACC+16*(a*nB+b)
                if 'oldgelu' in OPT:
                    seqs=[gelu_mul(e,d+t,d+8+t,24+2*t,25+2*t) for t in range(8)]
                else:
                    P=lambda r:f"v[{r}:{r+1}]"
                    seqs=[[f"v_pk_mul_f32 {P(t0)}, {P(g)}, {P(g)}",
                           f"v_pk_fma_f32 {P(t0)}, {P(t0)}, s[46:47], v[52:53] op_sel_hi:[1,0,0]",
                           f"v_pk_mul_f32 {P(t0)}, {P(t0)}, {P(g)}",
                           f"v_exp_f32 v{t0}, v{t0}\nv_exp_f32 v{t0+1}, v{t0+1}",
                           f"v_pk_mul_f32 {P(t0+2)}, {P(g)}, {P(g+8)}",
                           f"v_pk_add_f32 {P(t0)}, {P(t0)}, 1.0 op_sel_hi:[1,0]",
                           f"v_rcp_f32 v{t0}, v{t0}\nv_rcp_f32 v{t0+1}, v{t0+1}",
                           None,
                           f"v_pk_mul_f32 {P(g)}, {P(t0+2)}, {P(t0)}"] for g,t0 in [(d+2*p,24+4*p) for p in range(4)]]
                for st in range(9):
                    for sq in seqs:
                        if sq[st]: e(sq[st])
                o=44+4*((a*nB+b)%2)
                for t in range(4): e(f"v_cvt_pk_bf16_f32 v{o+t}, v{d+2*t}, v{d+2*t+1}")
                e(f"s_add_u32 s34, s33, {(b*288+a)*1024}\nbuffer_store_dwordx4 v[{o}:{o+3}], v14, s[8:11], s34 offen")
        stamp(e,3)
        e("s_waitcnt vmcnt(0)")
        stamp(e,4)
        stamp_out(e,5,int(os.environ.get("SWG","0")),tag)
        e("s_endpgm")
    e.lab("K1_END"); e("s_endpgm")
    return e.text()
```

```python
from gen_common import *
def k0():
    e=E(); head(e,"k0_kernel")
    e("""s_cmp_ge_u32 s2, 256
    s_cbranch_scc1 K0_END
    s_load_dwordx2 s[4:5], s[0:1], 0
    s_load_dwordx2 s[6:7], s[0:1], 72
    s_load_dwordx4 s[20:23], s[0:1], 8
    s_load_dwordx2 s[44:45], s[0:1], 32
    s_load_dwordx2 s[48:49], s[0:1], 40
    s_load_dwordx2 s[52:53], s[0:1], 48
    v_lshrrev_b32 v1, 6, v0
    v_and_b32 v2, 63, v0
    s_nop 0
    v_readfirstlane_b32 s3, v1
    v_and_b32 v3, 31, v2
    v_lshrrev_b32 v4, 5, v2
    s_mov_b32 s30, %s
    s_mov_b32 s31, %s
    s_waitcnt lgkmcnt(0)"""%(fbits(1/576),fbits(-576.0)))
    srd(e,8,6,WS_SIZE); srd(e,12,4,2048*576*2)
    stamp(e,0)
    e("s_cmp_ge_u32 s2, 224\ns_cbranch_scc1 K0_WT")
    e("""s_and_b32 s24, s2, 31
    s_lshr_b32 s25, s2, 5
    s_and_b32 s26, s3, 1
    s_lshr_b32 s27, s3, 1
    s_lshl_b32 s28, s24, 1
    s_add_u32 s28, s28, s26
    s_lshl_b32 s29, s28, 5
    v_add_u32 v5, s29, v3
    v_mul_u32_u24 v5, 1152, v5
    v_lshl_add_u32 v5, v4, 4, v5
    s_mul_i32 s33, s27, 288""")
    e("""s_lshl_b32 s34, s24, 6
    s_lshl_b32 s35, s3, 3
    s_add_u32 s34, s34, s35
    s_mul_i32 s34, s34, 1152
    s_mul_i32 s35, s35, 1168
    v_lshlrev_b32 v5, 4, v2
    s_mov_b32 exec_hi, 15""")
    for r in range(8):
        for hf in range(2):
            e(f"s_add_u32 m0, s35, {r*1168+hf*576}\ns_add_u32 s36, s34, {r*1152+hf*576}\nbuffer_load_dwordx4 v5, s[12:15], s36 offen lds")
    e("s_mov_b32 exec_hi, -1")
    e("s_cmp_ge_u32 s3, 6\ns_cbranch_scc1 K0_LN")
    e("""s_mul_i32 s34, s25, 3
    s_add_u32 s34, s34, s27
    s_lshl_b32 s34, s34, 5
    v_add_u32 v6, s34, v3
    v_lshrrev_b32 v7, 1, v6
    v_and_b32 v8, 1, v6
    v_cvt_f32_u32 v9, v7
    v_cvt_f32_u32 v10, v8
    v_mul_f32 v10, 0.25, v10
    v_cmp_ge_u32 vcc, 288, v7
    v_mov_b32 v11, 1.0
    v_mov_b32 v12, 0
    v_cndmask_b32 v11, 0, v11, vcc
    v_mov_b32 v19, %s
    v_mul_f32 v17, %s, v9
    s_mul_i32 s35, s26, 288
    v_lshlrev_b32 v15, 3, v4
    v_add_u32 v15, s35, v15
    v_cvt_f32_u32 v15, v15
    v_mul_f32 v16, v15, v9
    v_add_f32 v18, %s, v10"""%(fbits(-0.25),fbits(16.0),fbits(-0.25)))
    cosev(e,13,9,12,14,30,31)
    cosev(e,20,9,19,14,30,31)
    cosev(e,21,17,12,14,30,31)
    cosev(e,22,17,19,14,30,31)
    cosev(e,23,16,10,14,30,31)
    cosev(e,24,16,18,14,30,31)
    e("""s_nop 0
    v_mul_f32 v23, v23, v11
    v_mul_f32 v24, v24, v11
    v_add_f32 v15, v13, v13""")
    for fr in range(18):
        e("v_mul_f32 v25, v23, v13\nv_mul_f32 v34, v23, v21\nv_fma_f32 v25, -v24, v20, v25\nv_mul_f32 v35, v24, v21\nv_fma_f32 v26, v15, v25, -v23")
        e("v_fma_f32 v34, -v24, v22, v34\nv_fma_f32 v27, v15, v26, -v25\nv_fma_f32 v35, v23, v22, v35")
        e("v_fma_f32 v28, v15, v27, -v26")
        e(f"v_cvt_pk_bf16_f32 v{172+4*fr}, v23, v25")
        e("v_fma_f32 v29, v15, v28, -v27")
        e(f"v_cvt_pk_bf16_f32 v{173+4*fr}, v26, v27")
        e("v_fma_f32 v30, v15, v29, -v28\nv_mov_b32 v23, v34\nv_fma_f32 v31, v15, v30, -v29\nv_mov_b32 v24, v35")
        e(f"v_cvt_pk_bf16_f32 v{174+4*fr}, v28, v29\nv_cvt_pk_bf16_f32 v{175+4*fr}, v30, v31")
    e("s_branch K0_LN")
    e.lab("K0_GEN")
    e("""s_lshl_b32 s34, s2, 1
    s_add_u32 s34, s34, s3
    s_sub_u32 s34, s34, 6""")
    e.lab("K0_GL")
    e("""s_cmp_ge_u32 s34, 706
    s_cbranch_scc1 K0_DONE
    s_cmp_ge_u32 s34, 666
    s_cbranch_scc1 K0_GC""")
    e("""s_mul_i32 s35, s34, 1772
    s_lshr_b32 s35, s35, 16
    s_mul_i32 s36, s35, 37
    s_sub_u32 s36, s34, s36
    v_and_b32 v6, 0x13, v3
    v_bfe_u32 v7, v3, 2, 1
    v_lshl_or_b32 v6, v7, 3, v6
    v_bfe_u32 v7, v3, 3, 1
    v_lshl_or_b32 v6, v7, 2, v6
    s_lshl_b32 s37, s35, 5
    v_add_u32 v6, s37, v6
    v_cvt_f32_u32 v9, v6
    s_lshl_b32 s37, s36, 3
    v_lshlrev_b32 v7, 2, v4
    v_add_u32 v7, s37, v7""")
    for t in range(8):
        if t%2==0:
            e(f"""v_add_u32 v8, {t//2}, v7
            v_cvt_f32_u32 v12, v8
            v_mul_f32 v16, v12, v9
            v_cmp_eq_u32 s[40:41], 0, v8
            v_mov_b32 v17, 288
            v_cmp_eq_u32 s[42:43], v17, v8
            v_cmp_lt_u32 s[44:45], v17, v8
            s_or_b64 s[40:41], s[40:41], s[42:43]
            v_mov_b32 v17, {fbits(2/576/2048)}
            v_mov_b32 v18, {fbits(1/576/2048)}
            v_cndmask_b32 v17, v17, v18, s[40:41]
            v_cndmask_b32 v17, v17, 0, s[44:45]
            v_mov_b32 v10, 0""")
        else:
            e(f"""v_cndmask_b32 v17, v17, 0, s[40:41]
            v_mov_b32 v10, 0.25""")
        cosev(e,20+t,16,10,14,30,31)
        e(f"s_nop 0\nv_mul_f32 v{20+t}, v{20+t}, v17")
    for t in range(4): e(f"v_cvt_pk_bf16_f32 v{28+t}, v{20+2*t}, v{21+2*t}")
    e(f"""s_lshl_b32 s37, s34, 10
    s_add_u32 s37, s37, {GF}
    v_lshlrev_b32 v18, 4, v2
    buffer_store_dwordx4 v[28:31], v18, s[8:11], s37 offen
    s_branch K0_GN""")
    e.lab("K0_GC")
    e("""s_sub_u32 s35, s34, 666
    s_cmp_ge_u32 s35, 24
    s_cbranch_scc1 K0_GTW
    s_cmp_ge_u32 s35, 8
    s_cbranch_scc1 K0_G64""")
    e(f"""s_and_b32 s36, s35, 3
    s_lshr_b32 s37, s35, 2
    s_lshl_b32 s36, s36, 3
    v_lshlrev_b32 v7, 2, v4
    v_add_u32 v7, s36, v7
    v_cvt_f32_u32 v9, v3
    s_mov_b32 s40, {fbits(1/32)}
    s_mov_b32 s41, {fbits(-32.0)}
    s_cmp_eq_u32 s37, 0
    s_cselect_b32 s42, 0, {fbits(0.25)}
    s_cselect_b32 s43, {fbits(-0.25)}, 0""")
    for t in range(8):
        e(f"v_add_u32 v8, {t//2}, v7\nv_cvt_f32_u32 v12, v8\nv_mul_f32 v16, v12, v9\nv_mov_b32 v10, s{42+t%2}")
        cosev(e,20+t,16,10,14,40,41)
    e("s_nop 0")
    for t in range(4): e(f"v_cvt_pk_bf16_f32 v{28+t}, v{20+2*t}, v{21+2*t}")
    e(f"""s_lshl_b32 s37, s35, 10
    s_add_u32 s37, s37, {CF32}
    v_lshlrev_b32 v18, 4, v2
    buffer_store_dwordx4 v[28:31], v18, s[8:11], s37 offen
    s_branch K0_GN""")
    e.lab("K0_G64")
    e(f"""s_sub_u32 s35, s35, 8
    s_and_b32 s36, s35, 3
    s_lshl_b32 s36, s36, 4
    s_lshr_b32 s37, s35, 3
    s_lshl_b32 s37, s37, 5
    v_add_u32 v9, s37, v3
    v_cvt_f32_u32 v9, v9
    v_lshlrev_b32 v7, 2, v4
    v_add_u32 v7, s36, v7
    s_mov_b32 s40, {fbits(1/64)}
    s_mov_b32 s41, {fbits(-64.0)}
    s_bitcmp1_b32 s35, 2
    s_cselect_b32 s42, {fbits(0.25)}, 0
    v_mov_b32 v10, s42""")
    for t in range(8):
        e(f"v_add_u32 v8, {8*(t>>2)+(t&3)}, v7\nv_cvt_f32_u32 v12, v8\nv_mul_f32 v16, v12, v9")
        cosev(e,20+t,16,10,14,40,41)
    e("s_nop 0")
    for t in range(4): e(f"v_cvt_pk_bf16_f32 v{28+t}, v{20+2*t}, v{21+2*t}")
    e(f"""s_lshl_b32 s37, s35, 10
    s_add_u32 s37, s37, {CF64}
    v_lshlrev_b32 v18, 4, v2
    buffer_store_dwordx4 v[28:31], v18, s[8:11], s37 offen
    s_branch K0_GN""")
    e.lab("K0_GTW")
    e(f"""s_sub_u32 s35, s35, 24
    s_lshr_b32 s36, s35, 1
    s_lshl_b32 s36, s36, 3
    v_lshlrev_b32 v7, 2, v4
    v_add_u32 v7, s36, v7
    v_cvt_f32_u32 v9, v3
    s_mov_b32 s40, {fbits(1/2048)}
    s_mov_b32 s41, {fbits(-2048.0)}
    s_bitcmp1_b32 s35, 0
    s_cselect_b32 s42, {fbits(0.25)}, 0
    v_mov_b32 v10, s42""")
    for t in range(4):
        e(f"v_add_u32 v8, {t}, v7\nv_cvt_f32_u32 v12, v8\nv_mul_f32 v16, v12, v9")
        cosev(e,20+t,16,10,14,40,41)
    e(f"""s_lshl_b32 s37, s35, 10
    s_add_u32 s37, s37, {CTW}
    v_lshlrev_b32 v18, 4, v2
    s_nop 0
    buffer_store_dwordx4 v[20:23], v18, s[8:11], s37 offen""")
    e.lab("K0_GN")
    e("s_add_u32 s34, s34, 448\ns_nop 1\ns_branch K0_GL")
    RED=75776
    PR=81920
    e.lab("K0_LN")
    stamp(e,1)
    e("""s_lshl_b32 s36, s26, 5
    v_add_u32 v5, s36, v3
    v_mul_u32_u24 v5, 1168, v5
    v_lshl_add_u32 v5, v4, 4, v5
    v_add_u32 v5, s33, v5
    s_waitcnt vmcnt(0)
    s_barrier""")
    for c in range(9): e(f"ds_read_b128 v[{64+4*c}:{67+4*c}], v5 offset:{32*c}")
    e("s_waitcnt lgkmcnt(0)")
    stamp(e,2)
    if 'pf' in os.environ.get('OPT','').split(','):
        e(f"""s_mov_b32 s46, {576*4608*2}
        s_mov_b32 s47, 0x00020000
        s_mov_b32 s50, {576*4608*2}
        s_mov_b32 s51, 0x00020000
        s_mov_b32 s54, {576*4608*2}
        s_mov_b32 s55, 0x00020000
        s_lshl_b32 s56, s2, 3
        s_add_u32 s56, s56, s3
        s_mul_i32 s56, s56, 3072
        v_lshlrev_b32 v248, 4, v2
        v_add_u32 v248, s56, v248""")
        for sr in (44,48,52):
            for j in range(3): e(f"buffer_load_dwordx4 v[244:247], v248, s[{sr}:{sr+3}], 0 offen offset:{1024*j}")
    for j in range(36):
        e(f"v_lshlrev_b32 v{100+2*j}, 16, v{64+j}\nv_and_b32 v{101+2*j}, 0xffff0000, v{64+j}")
    for j in range(36):
        r=20+2*(j%4)
        e(f"v_mov_b32 v{r}, v{100+2*j}\nv_mov_b32 v{r+1}, v{101+2*j}" if j<4 else f"v_pk_add_f32 v[{r}:{r+1}], v[{100+2*j}:{101+2*j}], v[{r}:{r+1}]")
    e("v_pk_add_f32 v[20:21], v[20:21], v[22:23]\nv_pk_add_f32 v[24:25], v[24:25], v[26:27]\nv_pk_add_f32 v[20:21], v[20:21], v[24:25]\ns_nop 0\nv_add_f32 v6, v20, v21")
    e(f"""s_lshl_b32 s36, s26, 10
    s_lshl_b32 s37, s27, 3
    s_add_u32 s37, s37, s36
    s_add_u32 s37, s37, {RED}
    v_lshlrev_b32 v7, 5, v3
    v_lshl_add_u32 v8, v4, 2, v7
    v_add_u32 v8, s37, v8
    s_add_u32 s36, s36, {RED}
    v_add_u32 v7, s36, v7
    ds_write_b32 v8, v6
    s_waitcnt lgkmcnt(0)
    s_barrier
    ds_read_b128 v[20:23], v7
    ds_read_b128 v[24:27], v7 offset:16
    s_waitcnt lgkmcnt(0)
    v_pk_add_f32 v[20:21], v[20:21], v[22:23]
    v_pk_add_f32 v[24:25], v[24:25], v[26:27]
    v_pk_add_f32 v[20:21], v[20:21], v[24:25]
    s_nop 0
    v_add_f32 v20, v20, v21
    v_mul_f32 v28, {fbits(-1/576)}, v20
    v_mul_f32 v29, {fbits(-1/576)}, v20""")
    for j in range(36): e(f"v_pk_add_f32 v[{100+2*j}:{101+2*j}], v[{100+2*j}:{101+2*j}], v[28:29]")
    for j in range(36):
        r=20+2*(j%4)
        if j<4: e(f"v_pk_mul_f32 v[{r}:{r+1}], v[{100+2*j}:{101+2*j}], v[{100+2*j}:{101+2*j}]")
        else: e(f"v_pk_fma_f32 v[{r}:{r+1}], v[{100+2*j}:{101+2*j}], v[{100+2*j}:{101+2*j}], v[{r}:{r+1}]")
    e("""v_pk_add_f32 v[20:21], v[20:21], v[22:23]
    v_pk_add_f32 v[24:25], v[24:25], v[26:27]
    v_pk_add_f32 v[20:21], v[20:21], v[24:25]
    s_nop 0
    v_add_f32 v6, v20, v21
    ds_write_b32 v8, v6 offset:2048
    s_waitcnt lgkmcnt(0)
    s_barrier
    ds_read_b128 v[20:23], v7 offset:2048
    ds_read_b128 v[24:27], v7 offset:2064
    s_waitcnt lgkmcnt(0)
    v_pk_add_f32 v[20:21], v[20:21], v[22:23]
    v_pk_add_f32 v[24:25], v[24:25], v[26:27]
    v_pk_add_f32 v[20:21], v[20:21], v[24:25]
    s_nop 0
    v_add_f32 v20, v20, v21""")
    e(f"""v_mov_b32 v21, {fbits(1e-5)}
    v_fmac_f32 v21, {fbits(1/576)}, v20
    v_rsq_f32 v28, v21
    s_nop 0
    v_mov_b32 v29, v28
    s_mul_i32 s36, s26, 36
    s_mul_i32 s37, s27, 9
    s_add_u32 s36, s36, s37
    s_lshl_b32 s36, s36, 10
    v_lshlrev_b32 v18, 4, v2
    v_add_u32 v17, s36, v18""")
    for j in range(36): e(f"v_pk_mul_f32 v[{100+2*j}:{101+2*j}], v[{100+2*j}:{101+2*j}], v[28:29]")
    for c in range(9):
        for j in range(4*c,4*c+4): e(f"v_cvt_pk_bf16_f32 v{64+j}, v{100+2*j}, v{101+2*j}")
        e(f"ds_write_b128 v17, v[{64+4*c}:{67+4*c}] offset:{1024*c}")
    e(f"""s_cmp_lg_u32 s25, 0
    s_cbranch_scc1 K0_MM
    s_mul_i32 s36, s28, 36
    s_mul_i32 s37, s27, 9
    s_add_u32 s36, s36, s37
    s_lshl_b32 s36, s36, 10
    s_add_u32 s36, s36, {XN}
    v_add_u32 v19, 4096, v18""")
    for c in range(9):
        e(f"buffer_store_dwordx4 v[{64+4*c}:{67+4*c}], v{18 if c<4 else 19}, s[8:11], s36 offen offset:{1024*(c%4)}" if c<8 else f"v_add_u32 v19, 4096, v19\nbuffer_store_dwordx4 v[{64+4*c}:{67+4*c}], v19, s[8:11], s36 offen")
    e.lab("K0_MM")
    e("s_waitcnt lgkmcnt(0)\ns_barrier")
    stamp(e,3)
    e("s_cmp_ge_u32 s3, 6\ns_cbranch_scc1 K0_FIN")
    e("""s_mul_i32 s36, s26, 18432
    v_lshlrev_b32 v18, 4, v2
    v_add_u32 v18, s36, v18
    v_add_u32 v19, 36864, v18""")
    seq=[(c,t) for c in range(18) for t in range(2)]
    NR=9
    def rd(n):
        c,t=seq[n]; r=132+4*(n%NR)
        e(f"ds_read_b128 v[{r}:{r+3}], v{18+t} offset:{1024*c}")
    for n in range(NR): rd(n)
    for n,(c,t) in enumerate(seq):
        rem=min(36,n+NR)-n-1
        e(f"s_waitcnt lgkmcnt({rem})")
        r=132+4*(n%NR); d=100+16*t
        e(f"v_mfma_f32_32x32x16_bf16 v[{d}:{d+15}], v[{172+4*c}:{175+4*c}], v[{r}:{r+3}], {'0' if c==0 else f'v[{d}:{d+15}]'}")
        if n+NR<36: rd(n+NR)
    stamp(e,4)
    e(f"""s_lshl_b32 s36, s27, 1
    s_add_u32 s36, s36, s26
    s_lshl_b32 s36, s36, 12
    s_add_u32 s36, s36, {PR}
    v_lshlrev_b32 v18, 4, v2
    v_add_u32 v19, s36, v18
    v_xor_b32 v17, 4096, v19
    s_cmp_eq_u32 s26, 0
    s_nop 7
    s_nop 3
    s_cbranch_scc1 K0_S0""")
    for i in range(4): e(f"ds_write_b128 v19, v[{100+4*i}:{103+4*i}] offset:{i*1024}")
    for r in range(16): e(f"v_mov_b32 v{100+r}, v{116+r}")
    e("s_branch K0_S1")
    e.lab("K0_S0")
    for i in range(4): e(f"ds_write_b128 v19, v[{116+4*i}:{119+4*i}] offset:{i*1024}")
    e.lab("K0_S1")
    e.lab("K0_FIN")
    e("s_waitcnt lgkmcnt(0)\ns_barrier\ns_cmp_ge_u32 s3, 6\ns_cbranch_scc1 K0_GEN")
    for i in range(4): e(f"ds_read_b128 v[{116+4*i}:{119+4*i}], v17 offset:{i*1024}")
    e("s_waitcnt lgkmcnt(0)")
    for r in range(16): e(f"v_add_f32 v{100+r}, v{100+r}, v{116+r}")
    for i in range(4): e(f"v_cvt_pk_bf16_f32 v{20+2*i}, v{100+4*i}, v{101+4*i}\nv_cvt_pk_bf16_f32 v{21+2*i}, v{102+4*i}, v{103+4*i}")
    e(f"""s_mul_i32 s36, s25, 3
    s_add_u32 s36, s36, s27
    s_lshl_b32 s36, s36, 17
    s_lshl_b32 s37, s29, 2
    s_add_u32 s36, s36, s37
    s_add_u32 s36, s36, {Y1T}
    v_lshlrev_b32 v18, 14, v4
    v_lshl_add_u32 v18, v3, 2, v18
    v_add_u32 v19, 8192, v18""")
    for i in range(4):
        e(f"buffer_store_dword v{20+2*i}, v18, s[8:11], s36 offen\nbuffer_store_dword v{21+2*i}, v19, s[8:11], s36 offen\ns_add_u32 s36, s36, {4*8192}")
    e.lab("K0_DONE")
    stamp(e,5)
    e("s_waitcnt vmcnt(0)")
    stamp(e,6)
    stamp_out(e,7,0,"K0A")
    e("s_endpgm")
    e.lab("K0_WT")
    BL=64*578
    e(f"""s_sub_u32 s24, s2, 224
    s_mov_b32 s12, s20
    s_mov_b32 s13, s21
    s_mov_b32 s14, {2048*578}
    s_mov_b32 s16, s22
    s_mov_b32 s17, s23
    s_mov_b32 s18, {2048*578}
    s_mov_b32 s19, 0x00020000
    s_mul_i32 s25, s24, {BL}
    v_lshlrev_b32 v5, 4, v0
    s_lshl_b32 s26, s3, 10""")
    for m in range(2):
        for it in range(5):
            e(f"""s_add_u32 m0, s26, {m*40960+it*8192}
            s_add_u32 s27, s25, {it*8192}
            buffer_load_dwordx4 v5, s[{12+4*m}:{15+4*m}], s27 offen lds""")
    e(f"""s_lshl_b32 s28, s3, 1
    v_add_u32 v6, s28, v4
    v_mul_u32_u24 v7, 578, v3
    v_lshl_add_u32 v7, v6, 1, v7
    s_lshr_b32 s29, s24, 2
    s_lshl_b32 s29, s29, 1
    s_and_b32 s33, s24, 1
    s_add_u32 s29, s29, s33
    s_lshl_b32 s29, s29, 9
    s_bfe_u32 s33, s24, 0x10001
    s_lshl_b32 s33, s33, 8
    s_add_u32 s29, s29, s33
    s_add_u32 s29, s29, {WT}
    v_lshlrev_b32 v8, 13, v6
    v_lshl_add_u32 v8, v3, 3, v8
    s_waitcnt vmcnt(0)
    s_barrier
    s_movk_i32 s44, 296
    s_mov_b32 s34, 0""")
    stamp(e,1)
    e.lab("K0_WL")
    e(f"""ds_read_u16 v10, v7
    ds_read_u16 v12, v7 offset:40960
    ds_read_u16 v11, v7 offset:{32*578}
    ds_read_u16 v13, v7 offset:{40960+32*578}
    v_cmp_gt_u32 vcc, 289, v6
    v_cmp_gt_u32 s[40:41], s44, v6
    s_waitcnt lgkmcnt(0)
    v_lshl_or_b32 v10, v12, 16, v10
    v_lshl_or_b32 v11, v13, 16, v11
    v_cndmask_b32 v10, 0, v10, vcc
    v_cndmask_b32 v11, 0, v11, vcc
    s_and_saveexec_b64 s[42:43], s[40:41]
    buffer_store_dwordx2 v[10:11], v8, s[8:11], s29 offen
    s_mov_b64 exec, s[42:43]
    v_add_u32 v6, 16, v6
    v_add_u32 v7, 32, v7
    v_add_u32 v8, {16*8192}, v8
    s_add_u32 s34, s34, 1
    s_cmp_lt_u32 s34, 19
    s_cbranch_scc1 K0_WL
    s_waitcnt vmcnt(0)""")
    stamp(e,2)
    stamp_out(e,3,230,"K0W")
    e.lab("K0_END")
    e("s_endpgm")
    return e.text()
```
